```python
import torch

def _softmax(x, axis=-1):
    return torch.softmax(x, dim=axis)
def _gelu(x):
    return torch.nn.functional.gelu(x, approximate="tanh")
def _silu(x):
    return torch.nn.functional.silu(x)
def _sigmoid(x):
    return torch.sigmoid(x)
def _layernorm(x, axis=-1, eps=1e-5):
    m = x.mean(dim=axis, keepdim=True)
    v = x.var(dim=axis, keepdim=True, unbiased=False)
    return (x - m) / torch.sqrt(v + eps)
def _scatter_add(tgt, idx, src, axis=0):
    return tgt.clone().index_add_(axis, idx, src)
def _segment_sum(src, seg, n):
    out = torch.zeros((n,) + src.shape[1:], dtype=src.dtype)
    return out.index_add_(0, seg, src)
def _pad(x, pw):
    flat = tuple(v for pair in reversed(pw) for v in pair)
    return torch.nn.functional.pad(x, flat)

kernel_name = 'interleave_layers__ssm_conv_h3__glu_gated_geglu__prompt'

def setup_inputs():

    _w = (lambda a: (lambda t: t.to(torch.bfloat16) if t.is_floating_point() else t)(torch.as_tensor(a)))
    def _A_setup():
        B, S, D = 1, 2048, 640
        ks = 4
        return {
            "q": _w((lambda *s: torch.randn(*s, dtype=torch.bfloat16) * 0.05)(B, S, D)),
            "k": _w((lambda *s: torch.randn(*s, dtype=torch.bfloat16) * 0.2)(B, S, D)),
            "v": _w((lambda *s: torch.randn(*s, dtype=torch.bfloat16) * 0.2)(B, S, D)),
            "shift_k": _w((lambda *s: torch.randn(*s, dtype=torch.bfloat16) * 0.2)(D, ks) * 0.5),
            "ssm_k": _w((lambda *s: torch.randn(*s, dtype=torch.bfloat16) * 0.4)(D, S) * (1.0 / S ** 0.5)),
            "ssm_D": _w((lambda *s: torch.randn(*s, dtype=torch.bfloat16) * 0.2)(D)),
        }
    _A_in = _A_setup()

    def _B_setup():
        B, S, Dm, Df = 1, 2048, 640, 1536
        return {
            "x": _w((lambda *s: torch.randn(*s, dtype=torch.bfloat16) * 0.05)(B, S, Dm)),
            "w_gate": _w((lambda *s: torch.randn(*s, dtype=torch.bfloat16) * 0.4)(Dm, Df) * (Dm ** -0.5)),
            "w_up": _w((lambda *s: torch.randn(*s, dtype=torch.bfloat16) * 0.4)(Dm, Df) * (Dm ** -0.5)),
            "w_down": _w((lambda *s: torch.randn(*s, dtype=torch.bfloat16) * 0.4)(Df, Dm) * (Df ** -0.5)),
        }
    _B_in = _B_setup()

    return {
        "A_q": _A_in["q"],
        "A_k": _A_in["k"],
        "A_v": _A_in["v"],
        "A_shift_k": _A_in["shift_k"],
        "A_ssm_k": _A_in["ssm_k"],
        "A_ssm_D": _A_in["ssm_D"],
        "B_x": _B_in["x"],
        "B_w_gate": _B_in["w_gate"],
        "B_w_up": _B_in["w_up"],
        "B_w_down": _B_in["w_down"],
    }

def reference(A_q, A_k, A_v, A_shift_k, A_ssm_k, A_ssm_D, B_x, B_w_gate, B_w_up, B_w_down):
    def _A_ref(q, k, v, shift_k, ssm_k, ssm_D):
        B, S, D = q.shape
        ks = shift_k.shape[-1]
        k_pad = _pad(k, ((0, 0), (ks - 1, 0), (0, 0)))
        k_shift = torch.zeros_like(k)
        for t in range(ks):
            k_shift = k_shift + k_pad[:, t:t + S, :] * shift_k[:, ks - 1 - t][None, None, :]
        kv = k_shift * v
        L = 2 * S
        kv_pad = _pad(kv, ((0, 0), (0, S), (0, 0)))
        kf_pad = _pad(ssm_k, ((0, 0), (0, S)))
        kv_f = (lambda x, axes=(-2,-1): torch.fft.rfft2(x.float(), dim=axes))(kv_pad[:, None, :, :], axes=(1, 2))
        kf_f = (lambda x, axes=(-2,-1): torch.fft.rfft2(x.float(), dim=axes))(kf_pad[:, None, :], axes=(1, 2))
        kf_f = (lambda x, *d: x.permute(*d))(kf_f, 1, 2, 0)
        y_f = kv_f * kf_f[None, :, :, :]
        y = (lambda x, s, axes=(-2,-1): torch.fft.irfft2(x, s=s, dim=axes).to(torch.bfloat16))(y_f, (1, L), axes=(1, 2))[:, 0, :S, :]
        y = y + kv * ssm_D[None, None, :]
        return q * y

    def _B_ref(x, w_gate, w_up, w_down):
        g = torch.einsum("bsd,df->bsf", x, w_gate)
        u = torch.einsum("bsd,df->bsf", x, w_up)
        h = _gelu(g) * u
        return torch.einsum("bsf,fd->bsd", h, w_down)

    x = A_q
    x = x + _A_ref(_layernorm(x, axis=-1), A_k, A_v, A_shift_k, A_ssm_k, A_ssm_D)
    x = x + _B_ref(_layernorm(x, axis=-1), B_w_gate, B_w_up, B_w_down)
    x = x + _A_ref(_layernorm(x, axis=-1), A_k, A_v, A_shift_k, A_ssm_k, A_ssm_D)
    x = x + _B_ref(_layernorm(x, axis=-1), B_w_gate, B_w_up, B_w_down)
    return x
```

```python
import re
REG=re.compile(r'^(-?\|?)(v|a|s)(?:(\d+)|\[(\d+):(\d+)\])\|?$')
def regs(tok):
    tok=tok.strip()
    if tok in('vcc',): return [('s',106),('s',107)]
    if tok=='exec': return [('s',126),('s',127)]
    if tok=='m0': return [('s',124)]
    if tok=='vcc_lo': return [('s',106)]
    if tok=='vcc_hi': return [('s',107)]
    if tok=='exec_lo': return [('s',126)]
    if tok=='exec_hi': return [('s',127)]
    m=REG.match(tok)
    if not m: return []
    f=m.group(2)
    if m.group(3) is not None: return [(f,int(m.group(3)))]
    return [(f,i) for i in range(int(m.group(4)),int(m.group(5))+1)]
TRANS=('v_exp_f32','v_log_f32','v_rcp_f32','v_rsq_f32','v_sqrt_f32','v_sin_f32','v_cos_f32')
class I:
    def __init__(s,text):
        s.text=text
        t=text.split(';')[0].strip()
        s.label=t.endswith(':')
        s.mn=t.split()[0] if t else ''
        rest=t[len(s.mn):].strip()
        ops=[]; depth=0; cur=''
        for ch in rest:
            if ch in'[(': depth+=1
            if ch in'])': depth-=1
            if ch==',' and depth==0: ops.append(cur.strip()); cur=''
            else: cur+=ch
        if cur.strip(): ops.append(cur.strip())
        mods=''
        if ops:
            parts=ops[-1].split()
            if len(parts)>1:
                ops[-1]=parts[0]; mods=' '.join(parts[1:])
        s.ops=ops; s.mods=mods
        mn=s.mn
        s.mfma=mn.startswith('v_mfma')
        s.valu=mn.startswith('v_') and not s.mfma
        s.dpp=s.valu and ('_dpp' in mn or 'row_' in mods or 'quad_perm' in mods)
        s.trans=any(mn.startswith(x) for x in TRANS)
        s.dot=mn.startswith('v_dot')
        s.perml=mn.startswith('v_permlane')
        s.rdl=mn.startswith('v_readfirstlane') or mn.startswith('v_readlane')
        s.ds=mn.startswith('ds_'); s.vmem=mn.startswith('buffer_') or mn.startswith('global_')
        s.salu=mn.startswith('s_')
        s.lds_dma=s.vmem and ' lds' in (' '+mods)
        W=[];R=[]
        o=[regs(x) for x in ops]
        if s.mfma:
            W=o[0]; R=o[1]+o[2]+o[3]; s.A=o[1]; s.B=o[2]; s.C=o[3]
        elif s.valu:
            if mn.startswith('v_cmp'):
                W=o[0]; R=sum(o[1:],[])
            elif '_co_' in mn:
                W=o[0]+o[1]; R=sum(o[2:],[])
            elif s.perml and 'swap' in mn:
                W=o[0]+o[1]; R=o[0]+o[1]
            else:
                W=o[0]; R=sum(o[1:],[])
                if mn.startswith(('v_fmac','v_dot2c','v_mac','v_writelane')) or s.dpp: R=R+o[0]
                if mn.startswith('v_cndmask') and len(ops)==3: R=R+regs('vcc')
        elif s.ds:
            if mn.startswith('ds_read') or '_rtn' in mn or 'permute' in mn or 'swizzle' in mn:
                W=o[0]; R=sum(o[1:],[])
            else: R=sum(o,[])
        elif s.vmem:
            if 'load' in mn and not s.lds_dma: W=o[0]; R=sum(o[1:],[])
            else: R=sum(o,[])
            s.wide_store=('store' in mn and ('x3' in mn or 'x4' in mn))
            s.sdata=o[0] if 'store' in mn else []
        elif s.salu:
            if mn.startswith(('s_cmp','s_cbranch','s_branch','s_waitcnt','s_nop','s_barrier','s_endpgm','s_setprio','s_sleep','s_bitcmp')):
                R=sum(o,[])
            else:
                W=o[0] if o else []; R=sum(o[1:],[])
                if mn.startswith('s_bitset'): R=R+W
                if 'saveexec' in mn: W=W+regs('exec')
        s.W=set(W); s.R=set(R)
        s.ws=1
        if mn=='s_nop': s.ws=int(ops[0],0)+1
        if s.label or not mn: s.ws=0

def need_states(p,c):
    n=0
    vW={r for r in p.W if r[0] in'va'}; sW={r for r in p.W if r[0]=='s'}
    if p.mfma:
        D=p.W
        if c.mfma:
            if D&set(c.A) or D&set(c.B): n=max(n,8)
            if D&set(c.C):
                if set(c.C)==D: pass
                else: n=max(n,6)
            elif D&c.W: n=max(n,6)
        elif (c.valu or c.ds or c.vmem) and (D&c.R or D&c.W): n=max(n,8)
        if c.valu and set(p.C)&c.W: n=max(n,3)
    if p.valu:
        if c.mfma and vW&c.R: n=max(n,2)
        if c.dpp and vW&c.R: n=max(n,2)
        if c.perml and vW&c.R: n=max(n,2)
        if c.rdl and vW&c.R: n=max(n,1)
        if p.trans and c.valu and not c.trans and vW&c.R: n=max(n,1)
        if p.trans and c.valu and c.trans and vW&c.R: n=max(n,1)
        if p.dot and (c.valu or c.mfma or c.ds or c.vmem) and (vW&c.R or vW&c.W):
            if c.dot and c.mn==p.mn:
                srcAB=set(regs(c.ops[1])+regs(c.ops[2]))
                if vW&srcAB: n=max(n,3)
            else: n=max(n,3)
        if sW:
            if c.vmem and sW&c.R: n=max(n,5)
            if c.valu and sW&c.R: n=max(n,4 if c.rdl else 2)
            if (('s',126) in sW):
                if c.dpp: n=max(n,5)
                if c.mfma or c.rdl or c.perml: n=max(n,4)
            if c.salu and sW&c.R and not c.mn.startswith('s_cbranch'): n=max(n,1)
        if 'op_sel' in p.mods and not p.mn.startswith('v_pk') and c.valu and vW&c.R: n=max(n,1)
    if p.salu and ('s',124) in p.W and c.lds_dma: n=max(n,1)
    if p.vmem and getattr(p,'wide_store',False) and set(p.sdata)&c.W:
        n=max(n,2 if c.valu else 1)
    return n

class K:
    def __init__(s):
        s.ins=[]; s.uid=0; s.kernels=[]; s.launch=[]
        s.reset_counts()
    def reset_counts(s):
        s.nl=0; s.dl=0; s.nv=0; s.dv=0
    def __call__(s,text):
        for l in text.split('\n'):
            l=l.strip()
            if not l: continue
            i=I(l); s.ins.append(i)
            if i.ds: s.nl+=1; tok=('l',s.nl)
            elif i.vmem and not i.mn.startswith(('buffer_wbl2','buffer_inv')): s.nv+=1; tok=('v',s.nv)
            else: tok=None
            if i.mn=='s_waitcnt':
                m=re.search(r'vmcnt\((\d+)\)',l)
                if m: s.dv=max(s.dv,s.nv-int(m.group(1)))
                m=re.search(r'lgkmcnt\((\d+)\)',l)
                if m: s.dl=max(s.dl,s.nl-int(m.group(1)))
        return tok
    def need(s,*toks):
        flat=[]
        for t in toks:
            if t is None: continue
            if isinstance(t,list): flat+=t
            else: flat.append(t)
        L=max([t[1] for t in flat if t[0]=='l'],default=0); V=max([t[1] for t in flat if t[0]=='v'],default=0)
        w=[]
        if V>s.dv: w.append('vmcnt(%d)'%min(63,s.nv-V))
        if L>s.dl: w.append('lgkmcnt(%d)'%min(15,s.nl-L))
        if w: s('s_waitcnt '+' '.join(w))
    def lab(s,base='L'):
        s.uid+=1; return '%s_%d'%(base,s.uid)
    def raw(s,text):
        i=I(''); i.text=text; i.directive=True; s.ins.append(i)
    def begin(s,name):
        for t in ('.text','.globl %s'%name,'.p2align 8','.type %s,@function'%name): s.raw(t)
        s('%s:'%name)
    def end(s,name,vgpr,sgpr,accum):
        s('s_endpgm'); s.kernels.append((name,vgpr,sgpr,accum))
    def srd(s,d,base,nbytes):
        s('s_mov_b32 s%d, s%d'%(d,base)); s('s_and_b32 s%d, s%d, 0xffff'%(d+1,base+1))
        s('s_mov_b32 s%d, 0x%x'%(d+2,nbytes)); s('s_mov_b32 s%d, 0x20000'%(d+3))
    def fix(s,verbose=False):
        out=[]; added=0
        for c in s.ins:
            if c.mn and not c.label:
                dist=0; req=0
                for p in reversed(out):
                    if dist>=20: break
                    if p.mn and not p.label:
                        if p.mn in('s_branch','s_endpgm'): break
                        n=need_states(p,c)
                        if n-dist>req: req=n-dist; why=p
                        dist+=p.ws
                if req>0:
                    if verbose: print('nop %d before: %s   (after %s)'%(req,c.text,why.text))
                    out.append(I('s_nop %d'%(req-1))); added+=req
            out.append(c)
        s.ins=out
        lab={i.text.strip()[:-1]:k for k,i in enumerate(s.ins) if i.label}
        for k,b in enumerate(s.ins):
            if b.mn.startswith(('s_cbranch','s_branch')):
                t=lab.get(b.ops[0])
                if t is None: continue
                pd=0
                for p in reversed(s.ins[:k+1]):
                    if pd>=20: break
                    if not p.mn or p.label: continue
                    cd=pd
                    for c in s.ins[t:]:
                        if cd>=20: break
                        if not c.mn or c.label: continue
                        if p is not b and need_states(p,c)>cd:
                            raise Exception('hazard across branch %s: %s -> %s need %d have %d'%(b.text,p.text,c.text,need_states(p,c),cd))
                        cd+=c.ws
                        if c.mn in('s_branch','s_endpgm'): break
                    pd+=p.ws if p is not b else 1
                    if p is not b and p.mn in('s_branch','s_endpgm'): break
        return added
    def text(s,header=''):
        out=[header.rstrip('\n')] if header else []
        out+=s.launch
        out.append('.amdgcn_target "amdgcn-amd-amdhsa--gfx950"')
        for i in s.ins:
            if getattr(i,'directive',False) or i.label: out.append(i.text)
            else: out.append('    '+i.text)
        out.append('.section .rodata,"a"')
        for name,v,sg,acc in s.kernels:
            out+=['.p2align 6','.amdhsa_kernel %s'%name,'  .amdhsa_next_free_vgpr %d'%v,'  .amdhsa_next_free_sgpr %d'%sg,
                  '  .amdhsa_accum_offset %d'%acc,'  .amdhsa_group_segment_fixed_size 0','  .amdhsa_kernarg_size 104',
                  '  .amdhsa_user_sgpr_count 2','  .amdhsa_user_sgpr_kernarg_segment_ptr 1','  .amdhsa_system_sgpr_workgroup_id_x 1',
                  '  .amdhsa_float_denorm_mode_32 3','.end_amdhsa_kernel']
        return '\n'.join(out)+'\n'
```

```python
import sys, struct, json
from klib import K, I
NAME='interleave_layers__ssm_conv_h3__glu_gated_geglu__prompt'
OPT=dict(stamps=0, stop=99, fast=1)
for x in sys.argv[2:]:
    kx,vx=x.split('='); OPT[kx]=int(vx)
def fb(x): return struct.unpack('<I',struct.pack('<f',x))[0]

KVT=0x000000; QT=0x280000; X1=0x500000; YB=0x780000; X3=0xA00000; WDF=0xC80000
QR=0xE60000; QNM=0xE62000; ST1=0xE64000; ST2=0xE74000; EX=0xE84000; CS=0xEA4000
FLG=0xEC4000
H1=0x1000000; H2=0x1600000; STAMP=0x2000000
WSB=0x10000000; TB=2048*1280
LW=0; LWU=61440; LR=122880
LA=LR
LH=LR+24576
LCNT=LR+24576+3*4224
C_A=0; C_CV=4; C_MODE=8; C_S1=12; C_G0=16
SPIN=OPT.get('spin',1<<20)
INV=0x3acccccd
EPS=0x3727c5ac

k=K()
k.launch.append('; @launch grid=(256,1,1) block=(256,1,1) lds=163840')
k.begin(NAME+'_kernel')
SN={}
def stamp(name,lay=False):
    if OPT['stamps']:
        idx=SN.setdefault(name,len(SN))
        k('s_memtime s[98:99]'); k('s_waitcnt lgkmcnt(0)')
        if lay:
            k('s_mul_i32 s97, s13, 20'); k('s_add_u32 s97, s97, %d'%idx); k('s_mov_b32 s96, m0'); k('s_mov_b32 m0, s97'); k('v_writelane_b32 v0, s98, m0'); k('s_mov_b32 m0, s96')
        else: k('v_writelane_b32 v0, s98, %d'%idx)
def v4(r): return 'v[%d:%d]'%(r,r+3)
def v2(r): return 'v[%d:%d]'%(r,r+1)
def a4(r): return 'a[%d:%d]'%(r,r+3)
def S(x): return (lambda: k(x))
def K_(lst):
    for x in lst: t=k(x)
    return t
WS='s[8:11]'
LP=' sc1' if OPT.get('ldsc1',0) else ''

def hstore(instr):
    l1=k.lab('Lf'); l2=k.lab('Lg')
    k('s_cmp_eq_u32 s12, 1'); k('s_cbranch_scc1 %s'%l1)
    nv=k.nv
    for x in instr: k(x+' sc1')
    k('s_branch %s'%l2); k(l1+':')
    k.nv=nv
    for x in instr: t=k(x)
    k(l2+':')
    return t
def poll(loads, check):
    l=k.lab('Lpoll'); d=k.lab('Lpd')
    k('s_mov_b32 s79, 0'); k(l+':')
    for x in loads: k(x)
    k('s_waitcnt vmcnt(0)')
    for x in check: k(x)
    k('s_cbranch_vccz %s'%d)
    k('s_add_u32 s79, s79, 1'); k('s_cmp_lt_u32 s79, %d'%SPIN); k('s_cbranch_scc1 %s'%l)
    k(d+':')
def flag_addr(line):
    k('s_lshl_b32 s77, s4, 9'); k('s_lshl_b32 s76, s5, 2'); k('s_add_u32 s77, s77, s76'); k('s_add_u32 s77, s77, 0x%x'%(FLG+line))
def island_flag_store(phase, tmp, line=0, sc1=False):
    k('s_add_u32 s78, s6, %s'%phase); k('s_add_u32 s78, s78, s59')
    k('v_mov_b32 v%d, s78'%tmp); k('v_mov_b32 v%d, 0'%(tmp+1))
    flag_addr(line)
    k('s_mov_b64 exec, 1')
    x='buffer_store_dword v%d, v%d, %s, s77 offen'%(tmp,tmp+1,WS)
    if sc1: k(x+' sc1')
    else: hstore([x])
    k('s_mov_b64 exec, -1')
def island_poll(phase, tmp, nmem=32, line=0):
    k('v_min_u32 v%d, %d, v1'%(tmp,nmem-1)); k('v_lshlrev_b32 v%d, 2, v%d'%(tmp,tmp))
    k('s_lshl_b32 s77, s4, 9'); k('s_add_u32 s77, s77, 0x%x'%(FLG+line))
    poll(['buffer_load_dword v%d, v%d, %s, s77 offen sc1'%(tmp+1,tmp,WS)],
         ['v_subrev_u32 v%d, s6, v%d'%(tmp+1,tmp+1),'v_and_b32 v%d, -9, v%d'%(tmp+2,tmp+1),'v_subrev_u32 v%d, %s, v%d'%(tmp+2,phase,tmp+2),'v_cmp_le_u32 vcc, 6, v%d'%(tmp+2)])
def tag_from(v):
    k('v_readlane_b32 s6, v%d, s4'%v); k('v_readlane_b32 s59, v%d, s4'%(v+1))
    k('s_cmp_eq_u32 s59, s7'); k('s_cselect_b32 s59, 0, 8'); k('s_cselect_b32 s12, 1, 0')
    k('s_cmp_eq_u32 s6, 0'); k('s_cselect_b32 s12, 0, s12')
    if not OPT['fast']: k('s_mov_b32 s12, 0'); k('s_mov_b32 s59, 8')
def lds_wait(off,tmp):
    l=k.lab('Llw'); d=k.lab('Lld')
    k('v_mov_b32 v%d, %d'%(tmp,LCNT+off)); k('s_mov_b32 s79, 0'); k(l+':')
    k('ds_read_b32 v%d, v%d'%(tmp+1,tmp)); k('s_waitcnt lgkmcnt(0)')
    k('v_cmp_eq_u32 vcc, 0, v%d'%(tmp+1)); k('s_cbranch_vccz %s'%d)
    k('s_add_u32 s79, s79, 1'); k('s_cmp_lt_u32 s79, %d'%(SPIN*4)); k('s_cbranch_scc1 %s'%l)
    k(d+':')
def lds_set(off,val,tmp):
    k('v_mov_b32 v%d, %d'%(tmp,LCNT+off)); k('v_mov_b32 v%d, %s'%(tmp+1,val)); k('ds_write_b32 v%d, v%d'%(tmp,tmp+1))
def mode_from(v):
    k('v_readfirstlane_b32 s12, v%d'%v); k('s_lshr_b32 s12, s12, 1')
def last_arriver(cnt_off, n, tmp, body):
    k('v_mov_b32 v%d, %d'%(tmp,LCNT+cnt_off)); k('v_mov_b32 v%d, 1'%(tmp+1))
    k('s_mov_b64 exec, 1')
    t=k('ds_add_rtn_u32 v%d, v%d, v%d'%(tmp+2,tmp,tmp+1))
    k('s_mov_b64 exec, -1')
    k.need(t)
    k('v_readfirstlane_b32 s78, v%d'%(tmp+2))
    l=k.lab('Lnl')
    k('s_add_u32 s78, s78, 1'); k('s_cmp_lg_u32 s78, %s'%n); k('s_cbranch_scc1 %s'%l)
    body()
    k(l+':')
def g0_chk(r,e): return ['v_xor_b32 v%d, v%d, v%d'%(r+i,r+i,e) for i in range(4)]+['v_or_b32 v%d, v%d, v%d'%(r,r,r+1),'v_or3_b32 v%d, v%d, v%d, v%d'%(r,r,r+2,r+3),'v_cmp_ne_u32 vcc, 0, v%d'%r]
def wdf_loads(voff):
    out=[]
    for i in range(60):
        pre=['s_add_u32 s75, s74, %d'%(i*1024)] if i%4==0 else []
        out.append(pre+['buffer_load_dwordx4 %s, v%d, %s, s75 offen offset:%d sc1'%(a4(4*i),voff,WS,(i%4)*1024)])
    return out
def wdf_rest(wl,depth):
    for i,grp in enumerate(wl):
        for x in grp: k(x)
        if i>=depth: k('s_waitcnt vmcnt(%d)'%depth)
def wdf_base():
    k('s_and_b32 s74, s5, 7'); k('s_mul_i32 s74, s74, 48'); k('s_mul_i32 s75, s3, 12'); k('s_add_u32 s74, s74, s75')
    k('s_mul_i32 s74, s74, 5120'); k('s_add_u32 s74, s74, 0x%x'%WDF)

k('s_cmp_ge_u32 s2, 256'); k('s_cbranch_scc1 L_end')
k('s_load_dwordx16 s[16:31], s[0:1], 0'); k('s_load_dwordx8 s[32:39], s[0:1], 64'); k('s_load_dwordx2 s[40:41], s[0:1], 96')
k('v_lshrrev_b32 v2, 6, v0'); k('v_and_b32 v1, 63, v0')
k('v_readfirstlane_b32 s3, v2')
k('s_and_b32 s4, s2, 7'); k('s_lshr_b32 s5, s2, 3')
k('s_getreg_b32 s7, hwreg(HW_REG_XCC_ID, 0, 4)')
k('s_mov_b32 s12, 0'); k('s_mov_b32 s13, 0')
k('s_mov_b32 s14, 0x%x'%X1); k('s_mov_b32 s15, 0x%x'%H1); k('s_mov_b32 s42, 0x%x'%ST1)
k('s_waitcnt lgkmcnt(0)')
k.srd(8,40,WSB)
stamp('start')
if OPT['stamps']: k('s_memrealtime s[98:99]'); k('s_waitcnt lgkmcnt(0)'); k('v_writelane_b32 v0, s98, 62')
k('s_cmp_eq_u32 s3, 3'); k('s_cbranch_scc1 L_loader')

k.srd(44,18,TB); k.srd(48,20,TB); k.srd(56,22,640*8)
k('v_and_b32 v2, 3, v1'); k('v_lshrrev_b32 v3, 2, v1')
k('s_lshl_b32 s64, s3, 2'); k('v_add_u32 v4, s64, v2'); k('v_min_u32 v4, 9, v4')
k('s_mul_i32 s65, s4, 80'); k('v_lshl_add_u32 v4, v4, 3, s65')
k('s_mul_i32 s66, s5, %d'%(64*1280)); k('v_mul_u32_u24 v5, %d, v3'%(4*1280))
k('v_lshl_add_u32 v5, v4, 1, v5'); k('v_add_u32 v5, s66, v5')
k('v_subrev_u32 v6, 3840, v5'); k('v_lshlrev_b32 v7, 3, v4')
tk=[]
for r in range(4): tk.append(k('buffer_load_dwordx4 %s, v5, s[44:47], 0 offen offset:%d'%(v4(28+4*r),1280*r)))
tv=[k('buffer_load_dwordx4 %s, v5, s[48:51], 0 offen offset:%d'%(v4(44+4*r),1280*r)) for r in range(4)]
for r in range(3): tk.append(k('buffer_load_dwordx4 %s, v6, s[44:47], 0 offen offset:%d'%(v4(16+4*r),1280*r)))
tw=[k('buffer_load_dwordx4 %s, v7, s[56:59], 0 offen offset:%d'%(v4(76+4*r),16*r)) for r in range(4)]
k('s_barrier')
k.srd(52,16,TB); k.srd(60,24,TB)
k('s_mul_i32 s67, s5, 3'); k('s_add_u32 s67, s67, s3'); k('s_min_u32 s68, s67, 79'); k('s_add_u32 s68, s65, s68')
k('v_lshlrev_b32 v7, 4, v1')
k('s_mul_i32 s69, s3, 4224'); k('s_add_u32 s69, s69, %d'%LH)
k('s_add_u32 m0, s69, 32'); k('s_lshl_b32 s70, s68, 12')
for t in range(4): k('buffer_load_dwordx4 v7, s[60:63], s70 offen offset:%d lds'%(1024*t))
k('s_and_b32 s71, s68, -2'); k('s_lshl_b32 s71, s71, 1'); k('s_load_dword s72, s[26:27], s71')
k('v_mov_b32 v8, 0'); k('v_mov_b32 v9, 0'); k('v_lshlrev_b32 v10, 3, v1'); k('v_add_u32 v10, s69, v10')
k('s_mov_b64 exec, 15'); k('ds_write_b64 v10, v[8:9]'); k('s_mov_b64 exec, -1')
tq=[k('buffer_load_dwordx4 %s, v5, s[52:55], 0 offen offset:%d'%(v4(60+4*r),1280*r)) for r in range(4)]
k.srd(52,38,256)
k('s_mov_b32 s62, 0x05040100'); k('s_mov_b32 s63, 0x07060302'); k('s_mov_b32 s64, 0xffff0000')
k('s_lshl_b32 s66, s3, 13'); k('s_add_u32 s66, s66, %d'%LA)
k('v_lshrrev_b32 v8, 1, v3'); k('v_lshlrev_b32 v9, 1, v2'); k('v_xor_b32 v8, v8, v9'); k('v_lshlrev_b32 v8, 4, v8')
k('v_and_b32 v9, 1, v3'); k('v_lshl_add_u32 v8, v9, 3, v8'); k('v_lshl_add_u32 v8, v2, 10, v8'); k('v_add_u32 v8, s66, v8')
k('v_lshrrev_b32 v9, 3, v1'); k('v_and_b32 v10, 7, v1')
k('v_lshlrev_b32 v11, 7, v9'); k('v_add_u32 v11, s66, v11')
k('s_lshl_b32 s70, s3, 5'); k('s_add_u32 s70, s70, s65')
k('v_add_u32 v12, s70, v9'); k('v_lshlrev_b32 v12, 12, v12'); k('v_lshl_add_u32 v12, v10, 4, v12')
k('s_lshl_b32 s70, s5, 7'); k('v_add_u32 v12, s70, v12')
k('s_waitcnt lgkmcnt(0)')
k('s_bitcmp1_b32 s68, 0'); k('s_cselect_b32 s70, 0, 16'); k('s_lshl_b32 s72, s72, s70'); k('s_and_b32 s72, s72, 0xffff0000'); k('s_mov_b32 s73, s72')
k('v_and_b32 v13, 7, v1'); k('v_lshlrev_b32 v13, 3, v13')
k.need(tk,tw)
tm=k('buffer_load_dwordx2 v[14:15], v13, s[52:55], 0 offen sc1')
P=96; KS=112; VV=128; OUT=144
for dd in range(4):
    for par in range(2):
        sel='s62' if par==0 else 's63'
        for s in range(-2,4):
            k('v_perm_b32 v%d, v%d, v%d, %s'%(P+8*par+s+2, 16+4*(s-1+3)+dd, 16+4*(s+3)+dd, sel))
    for par in range(2):
        d=2*dd+par
        for s in range(4): k('v_dot2_f32_bf16 v%d, v%d, v%d, 0'%(KS+2*s+par, P+8*par+s, 76+2*d+1))
    for s in range(4):
        k('v_lshlrev_b32 v%d, 16, v%d'%(VV+2*s,44+4*s+dd)); k('v_and_b32 v%d, s64, v%d'%(VV+2*s+1,44+4*s+dd))
    for par in range(2):
        d=2*dd+par
        for s in range(4): k('v_dot2_f32_bf16 v%d, v%d, v%d, v%d'%(KS+2*s+par, P+8*par+s+2, 76+2*d, KS+2*s+par))
    o=OUT+4*(dd&1)
    k('s_nop 1')
    for s in range(4): k('v_pk_mul_f32 %s, %s, %s'%(v2(KS+2*s),v2(KS+2*s),v2(VV+2*s)))
    for par in range(2):
        for sp in range(2): k('v_cvt_pk_bf16_f32 v%d, v%d, v%d'%(o+2*par+sp, KS+4*sp+par, KS+4*sp+2+par))
    for par in range(2): k('ds_write_b64 v8, %s offset:%d'%(v2(o+2*par),(2*dd+par)*128))
rd=[]
for t in range(4):
    k('v_xor_b32 v13, %d, v10'%(2*t)); k('v_lshl_add_u32 v%d, v13, 4, v11'%(96+t))
    rd.append(k('ds_read_b128 %s, v%d offset:%d'%(v4(16+4*t),96+t,1024*t)))
k.need(tq)
for dd in range(4):
    o=OUT+4*(dd&1)
    for par in range(2):
        sel='s62' if par==0 else 's63'
        for sp in range(2): k('v_perm_b32 v%d, v%d, v%d, %s'%(o+2*par+sp, 60+4*(2*sp+1)+dd, 60+4*(2*sp)+dd, sel))
    for par in range(2): k('ds_write_b64 v8, %s offset:%d'%(v2(o+2*par),4096+(2*dd+par)*128))
for t in range(4): rq_=k('ds_read_b128 %s, v%d offset:%d'%(v4(32+4*t),96+t,4096+1024*t))
k('s_mov_b32 s76, %d'%KVT); k('s_mov_b32 s77, %d'%(KVT+32768)); k('s_mov_b32 s78, %d'%QT); k('s_mov_b32 s71, %d'%(QT+32768)); k('v_add_u32 v13, 0x10000, v12')
k.need(tm); tag_from(14)
k('s_cmp_eq_u32 s3, 2'); k('s_cbranch_scc1 L_a_w2')
k.need(rd[3])
hstore(['buffer_store_dwordx4 %s, v%d, %s, %s offen'%(v4(16+4*t),12+(t>>1),WS,('s76','s77')[t&1]) for t in range(4)])
k('s_waitcnt lgkmcnt(0)')
hstore(['buffer_store_dwordx4 %s, v%d, %s, %s offen'%(v4(32+4*t),12+(t>>1),WS,('s78','s71')[t&1]) for t in range(4)])
k('s_branch L_a_done')
k('L_a_w2:')
k('s_waitcnt lgkmcnt(0)')
hstore(['buffer_store_dwordx4 %s, v12, %s, %s offen'%(v4(r),WS,sg) for r,sg in ((16,'s76'),(20,'s77'),(32,'s78'),(36,'s71'))])
k('L_a_done:')
k('v_mov_b32 v8, 0'); k('v_lshlrev_b32 v10, 2, v1'); k('v_add_u32 v10, s66, v10'); k('ds_write_b32 v10, v8')
UB=16; HB=144; AC=[208,216]; YR=224; KVr=232; Qr=236; Rr=240; NMr=248
k('v_and_b32 v10, 3, v1'); k('v_bfe_u32 v11, v1, 2, 2'); k('v_lshrrev_b32 v12, 4, v1'); k('v_and_b32 v13, 15, v1')
k('v_add_u32 v2, v10, v12'); k('v_lshlrev_b32 v2, 6, v2'); k('v_lshl_add_u32 v2, v11, 3, v2'); k('s_add_u32 s71, s66, 32'); k('v_add_u32 v2, s71, v2')
k('v_sub_u32 v3, v10, v11'); k('v_lshlrev_b32 v3, 3, v3'); k('v_lshlrev_b32 v14, 6, v12'); k('v_sub_u32 v3, v3, v14')
k('s_add_u32 s71, s69, 224'); k('v_add_u32 v3, s71, v3')
k('v_mov_b32 v14, s69'); k('v_mov_b32 v15, s66')
k('v_cmp_le_u32 vcc, 2, v12'); k('v_and_b32 v5, 1, v12'); k('v_add_u32 v6, 1, v12'); k('v_cndmask_b32 v4, v14, v15, vcc')
k('v_lshl_add_u32 v4, v5, 7, v4'); k('v_lshl_add_u32 v4, v13, 2, v4')
k('v_and_b32 v8, 2, v6'); k('v_cmp_ne_u32 vcc, 0, v8'); k('v_and_b32 v8, 1, v6'); k('v_lshrrev_b32 v9, 2, v6'); k('v_cndmask_b32 v5, v14, v15, vcc')
k('v_lshl_add_u32 v5, v8, 7, v5'); k('v_lshl_add_u32 v5, v9, 8, v5'); k('v_lshl_add_u32 v5, v13, 2, v5')
k('v_and_b32 v8, 8, v1'); k('v_cmp_ne_u32 vcc, 0, v8'); k('v_and_b32 v8, 7, v1'); k('v_lshrrev_b32 v9, 3, v1'); k('v_cndmask_b32 v6, v14, v15, vcc')
k('v_lshl_add_u32 v6, v12, 8, v6'); k('v_lshl_add_u32 v6, v8, 5, v6')
k('s_mov_b32 s71, 81920'); k('v_mul_lo_u32 v9, v9, s71'); k('v_lshl_add_u32 v9, v8, 4, v9')
k('s_lshl_b32 s71, s68, 7'); k('v_add_u32 v9, s71, v9')
k('v_lshlrev_b32 v8, 5, v1')
k('s_lshl_b32 s65, s68, 12')
wdf_base()
stamp('Acomp')
k('s_waitcnt vmcnt(0)')
stamp('Adrain')
def rdH(m): return ['ds_read_b64_tr_b16 %s, v3 offset:%d'%(v2(HB+4*m+2*hh),256*m+32*(1-hh)) for hh in range(2)]
def rdU(n,o): return ['ds_read_b64_tr_b16 %s, v2 offset:%d'%(v2(UB+8*n+4*o+2*hh),256*n+32*o+32*hh) for hh in range(2)]
def s1_body():
    k('s_cmp_lg_u32 s6, 0'); k('s_cbranch_scc1 L_tagok')
    k('v_and_b32 v13, 7, v1'); k('v_lshlrev_b32 v13, 3, v13')
    poll(['buffer_load_dwordx2 v[14:15], v13, s[52:55], 0 offen sc1'],['v_cmp_eq_u32 vcc, 0, v14'])
    tag_from(14)
    k('L_tagok:')
    island_flag_store('1',12)
    k('s_cmp_eq_u32 s12, 0'); k('s_cbranch_scc1 L_s1slow')
    island_poll('1',12)
    k('v_and_b32 v13, 8, v13'); k('v_cmp_ne_u32 vcc, 0, v13'); k('s_cbranch_vccz L_s1ok')
    k('buffer_wbl2 sc1'); k('s_waitcnt vmcnt(0)'); k('s_mov_b32 s12, 0')
    k('L_s1slow:')
    island_flag_store('1',12,line=384,sc1=True); island_poll('1',12,line=384)
    k('L_s1ok:')
    k('v_mov_b32 v12, %d'%(LCNT+C_MODE)); k('s_add_u32 s76, s12, 1'); k('v_mov_b32 v14, s76'); k('v_mov_b32 v15, s6'); k('ds_write_b64 v12, v[14:15]')
last_arriver(C_A,'3',10,s1_body)
def mode_wait(tmp):
    lds_wait(C_MODE,tmp); mode_from(tmp+1)
    k('ds_read_b32 v%d, v%d offset:4'%(tmp+1,tmp)); k('s_waitcnt lgkmcnt(0)'); k('v_readfirstlane_b32 s6, v%d'%(tmp+1))
    k('s_lshl_b32 s59, s12, 3'); k('s_xor_b32 s59, s59, 8')
mode_wait(10)
stamp('S1')
k('s_cmp_lt_u32 s67, 80'); k('s_cbranch_scc1 L_conv')
lds_wait(C_G0,10)
for grp in wdf_loads(7): K_(grp)
k('s_cmp_lg_u32 s5, 31'); k('s_cbranch_scc1 L_pre'); k('s_cmp_lg_u32 s3, 0'); k('s_cbranch_scc1 L_pre')
island_poll('2',10,27)
k('s_add_u32 s78, s6, 1'); k('v_mov_b32 v10, s78'); k('v_lshlrev_b32 v11, 9, v1')
k('s_lshl_b32 s77, s4, 2'); k('s_add_u32 s77, s77, 0x%x'%(FLG+256))
k('s_mov_b64 exec, 0xff'); k('buffer_store_dword v10, v11, %s, s77 offen sc1'%WS); k('s_mov_b64 exec, -1')
k('s_branch L_pre')

k('L_conv:')
k.reset_counts()
k('s_add_u32 m0, s66, 256'); k('s_add_u32 s70, s65, %d'%KVT)
tU=[k('buffer_load_dwordx4 v7, %s, s70 offen offset:%d sc1 lds'%(WS,1024*t)) for t in range(4)]
tok={}
PRE=4
for m in range(PRE):
    for x in rdH(m): tok['H',m]=k(x)
k.need(tU[0])
for n in range(PRE-1):
    for o in range(2):
        for x in rdU(n,o): tok['U',n]=k(x)
k.need(tU[3])
for o in range(2):
    for x in rdU(PRE-1,o): tok['U',PRE-1]=k(x)
DP='row_mask:0xf bank_mask:0xf bound_ctrl:0'
def post(b):
    E=AC[b&1]; O=E+4; cn=12+(b&1); cp=12+((b+1)&1)
    g=['v_add_f32_dpp v10, v%d, v%d row_shr:1 %s'%(E+1,E,DP),
       'v_add_f32_dpp v11, v%d, v%d row_shr:1 %s'%(O+1,O,DP),
       'v_mov_b32_dpp v%d, v%d row_shl:15 %s'%(cn,O+1,DP),
       'v_add_f32_dpp v10, v%d, v10 row_shr:2 %s'%(E+2,DP),
       'v_add_f32_dpp v11, v%d, v11 row_shr:2 %s'%(O+2,DP),
       'v_add_f32_dpp v%d, v%d, v%d row_shl:14 %s'%(cn,O+2,cn,DP),
       'v_add_f32_dpp v10, v%d, v10 row_shr:3 %s'%(E+3,DP),
       'v_add_f32_dpp v11, v%d, v11 row_shr:3 %s'%(O+3,DP),
       'v_add_f32_dpp v%d, v%d, v%d row_shl:13 %s'%(cn,O+3,cn,DP),
       'ds_write_b32 v4, v10 offset:%d'%(256*b),
       'v_add_f32_dpp v11, v%d, v11 row_shl:15 %s'%(E+1,DP)]
    if b>0: g.append('ds_add_f32 v5, v%d offset:%d'%(cp,256*(b-1)))
    g+=['v_add_f32_dpp v11, v%d, v11 row_shl:14 %s'%(E+2,DP),
        'v_add_f32_dpp v11, v%d, v11 row_shl:13 %s'%(E+3,DP),
        'ds_write_b32 v4, v11 offset:%d'%(256*b+64)]
    if b==15: g.append('ds_add_f32 v5, v%d offset:%d'%(cn,256*b))
    return g
def tk_(key,x):
    def f(): tok[key]=k(x)
    return f
def chunk_loads(c):
    return [S('s_add_u32 s70, s65, %d'%(KVT+1024*c)),S('buffer_load_dwordx4 %s, v7, %s, s70 offen sc1'%(v4(KVr),WS)),
            S('s_add_u32 s70, s65, %d'%(QT+1024*c)),S('buffer_load_dwordx4 %s, v7, %s, s70 offen sc1'%(v4(Qr),WS)),
            S('s_mov_b32 s70, %d'%(QR+2048*c)),S('buffer_load_dwordx4 %s, v8, %s, s70 offen sc1'%(v4(Rr),WS)),
            S('buffer_load_dwordx4 %s, v8, %s, s70 offen offset:16 sc1'%(v4(Rr+4),WS)),
            S('s_mov_b32 s70, %d'%(QNM+2048*c)),S('buffer_load_dwordx4 %s, v8, %s, s70 offen sc1'%(v4(NMr),WS)),
            tk_(('cl',c),'buffer_load_dwordx4 %s, v8, %s, s70 offen offset:16 sc1'%(v4(NMr+4),WS))]
def chunk_store(c,xq,xy):
    return ['s_mov_b32 s70, %d'%(X1+8*81920*c),'buffer_store_dwordx4 %s, v9, %s, s70 offen sc1'%(v4(xq),WS),
            's_mov_b32 s70, %d'%(YB+8*81920*c),'buffer_store_dwordx4 %s, v9, %s, s70 offen sc1'%(v4(xy),WS)]
def chunk_compute(c):
    f=[S('ds_read_b128 %s, v6 offset:%d'%(v4(YR),1024*c)),tk_(('cy',c),'ds_read_b128 %s, v6 offset:%d'%(v4(YR+4),1024*c+16))]
    for i in range(4):
        def a0(i=i):
            if i==0: k.need(tok['cl',c])
            k('v_lshlrev_b32 v14, 16, v%d'%(KVr+i))
        def a1(i=i):
            if i==0: k.need(tok['cy',c])
            k('v_pk_fma_f32 %s, v[14:15], s[72:73], %s op_sel_hi:[1,0,1]'%(v2(YR+2*i),v2(YR+2*i)))
        f+=[a0,S('v_and_b32 v15, s64, v%d'%(KVr+i)),a1,S('v_lshlrev_b32 v14, 16, v%d'%(Qr+i)),S('v_and_b32 v15, s64, v%d'%(Qr+i)),
            S('v_pk_fma_f32 %s, v[14:15], %s, %s'%(v2(Rr+2*i),v2(Rr+2*i),v2(NMr+2*i))),
            S('v_cvt_pk_bf16_f32 v%d, v%d, v%d'%(KVr+i,YR+2*i,YR+2*i+1)),
            S('v_pk_fma_f32 %s, %s, %s, v[14:15]'%(v2(Rr+2*i),v2(Rr+2*i),v2(YR+2*i))),
            S('v_cvt_pk_bf16_f32 v%d, v%d, v%d'%(Qr+i,Rr+2*i,Rr+2*i+1))]
    if c<3 and OPT.get('defer',1):
        f+=[S('ds_write_b128 v6, %s offset:%d'%(v4(Qr),1024*c)),S('ds_write_b128 v6, %s offset:%d'%(v4(KVr),1024*c+16))]
    else: f+=[S(x) for x in chunk_store(c,Qr,KVr)]
    return f
wl=wdf_loads(7)
wl_per_step={b:OPT.get('wl%d'%b,d) for b,d in ((10,0),(11,0),(12,0),(13,6),(14,6))}
CL={7:0,10:1,12:2,14:3}; CC={9:0,11:1,13:2}
for b in range(16):
    postg=[S(x) for x in post(b-1)] if b>0 else []
    rds=[]
    if b+PRE<16:
        rds=[tk_(('H',b+PRE),x) for x in rdH(b+PRE)]+[tk_(('U',b+PRE),x) for o in range(2) for x in rdU(b+PRE,o)]
    fill=rds+postg
    if b in CC: fill+=chunk_compute(CC[b])
    if b in CL:
        if CL[b]==0: fill.append(lambda: lds_wait(C_G0,YR))
        fill+=chunk_loads(CL[b])
    for _ in range(wl_per_step.get(b,0)): fill+=[S(x) for x in wl.pop(0)]
    order=list(range(1,b))+([0,b] if b>0 else [0])
    mf=[]
    for idx,n in enumerate(order):
        for o in range(2):
            acc=AC[b&1]+4*o
            mf.append((n,b-n,'v_mfma_f32_16x16x32_bf16 %s, %s, %s, %s'%(v4(acc),v4(UB+8*n+4*o),v4(HB+4*(b-n)),'0' if idx==0 else v4(acc))))
    nf=len(fill); nm=len(mf)
    if b in(0,5,9,13): stamp('cv%d'%b)
    lead=0 if rds else min(4,nm-1)
    for i,(n,m,x) in enumerate(mf):
        k.need(tok['U',n],tok['H',m])
        k(x)
        if i>=lead:
            for f in fill[((i-lead)*nf)//(nm-lead):((i-lead+1)*nf)//(nm-lead)]: f()
if OPT.get('defer',1):
    tb=[(k('ds_read_b128 %s, v6 offset:%d'%(v4(UB+8*c),1024*c)),k('ds_read_b128 %s, v6 offset:%d'%(v4(UB+8*c+4),1024*c+16))) for c in range(3)]
for x in post(15): k(x)
if OPT.get('defer',1):
    for c in range(3):
        k.need(tb[c][1]); K_(chunk_store(c,UB+8*c,UB+8*c+4))
for f in chunk_compute(3): f()
stamp('conv')
k('s_waitcnt vmcnt(0)')
stamp('convdr')
k('s_cmp_eq_u32 s5, 26'); k('s_cselect_b32 s70, 2, 3')
last_arriver(C_CV,'s70',10,lambda: island_flag_store('2',14))
wdf_rest(wl,OPT.get('wdep',5))
k('s_branch L_pre')

k('L_loader:')
k.reset_counts()
for i in range(4): k('v_mov_b32 v%d, 0'%(8+i))
k.srd(60,38,256)
k('s_cmp_lg_u32 s5, 0'); k('s_cbranch_scc1 L_notag')
k('s_memrealtime s[64:65]'); k('s_waitcnt lgkmcnt(0)'); k('s_lshl_b32 s64, s64, 4'); k('s_or_b32 s64, s64, 0x80000000')
k('v_mov_b32 v12, s64'); k('v_mov_b32 v13, s7'); k('s_lshl_b32 s65, s4, 3')
k('s_mov_b64 exec, 1'); k('buffer_store_dwordx2 v[12:13], v8, s[60:63], s65 offen sc1'); k('s_mov_b64 exec, -1')
k('L_notag:')
k.reset_counts()
k('v_mov_b32 v13, %d'%LCNT); k('ds_write_b128 v13, v[8:11]'); k('ds_write_b128 v13, v[8:11] offset:16')
k.srd(44,16,TB)
k('v_lshrrev_b32 v2, 3, v1'); k('v_and_b32 v3, 7, v1'); k('s_lshl_b32 s64, s2, 3'); k('v_add_u32 v4, s64, v2')
k('v_mul_u32_u24 v5, 1280, v4'); k('v_lshl_add_u32 v5, v3, 4, v5')
k('s_waitcnt lgkmcnt(0)'); k('s_barrier')
tq=[k('buffer_load_dwordx4 %s, v5, s[44:47], 0 offen offset:%d'%(v4(16+4*t),128*t)) for t in range(10)]
k.srd(48,34,1536*1280); k.srd(52,30,640*3072); k.srd(56,32,640*3072)
LST=LWU+51200
k('s_cmp_ge_u32 s2, 192'); k('s_cbranch_scc1 L_nowd1')
for t in range(5):
    k('v_add_u32 v6, %d, v1'%(64*t)); k('v_mul_u32_u24 v7, 6554, v6'); k('v_lshrrev_b32 v7, 16, v7')
    k('v_mul_u32_u24 v12, 10, v7'); k('v_sub_u32 v6, v6, v12'); k('v_mul_u32_u24 v7, 1280, v7'); k('v_lshl_add_u32 v%d, v6, 4, v7'%(60+t))
sv=k.nv
for e in range(2):
    k('s_lshl_b32 s65, s2, 1'); k('s_add_u32 s65, s65, %d'%e); k('s_and_b32 s66, s65, 7'); k('s_lshr_b32 s67, s65, 3')
    k('s_mul_i32 s68, s67, %d'%(32*1280)); k('s_mul_i32 s69, s66, 160'); k('s_add_u32 s68, s68, s69')
    k('s_mul_i32 s69, s66, 48'); k('s_add_u32 s69, s69, s67'); k('s_mul_i32 s69, s69, 5120'); k('s_add_u32 s%d, s69, 0x%x'%(70+e,WDF))
    for t in range(5):
        k('s_mov_b32 m0, %d'%(LST+5120*e+1024*t)); k('buffer_load_dwordx4 v%d, s[48:51], s68 offen lds'%(60+t))
k.nv=sv
k('L_nowd1:')
for i in range(4): k('v_mov_b32 v%d, -1'%(12+i))
k('v_lshlrev_b32 v7, 4, v1'); k('s_lshl_b32 s65, s2, 10'); k('s_add_u32 s65, s65, 0x%x'%ST1)
k('buffer_store_dwordx4 v[12:15], v7, %s, s65 offen sc1'%WS)
for t in range(3):
    k('v_add_u32 v6, %d, v1'%(64*t)); k('v_mul_u32_u24 v8, 10923, v6'); k('v_lshrrev_b32 v8, 16, v8')
    k('v_mul_u32_u24 v9, 6, v8'); k('v_sub_u32 v6, v6, v9'); k('v_mul_u32_u24 v8, 3072, v8'); k('v_lshl_add_u32 v%d, v6, 4, v8'%(66+t))
k('s_mul_i32 s72, s5, 96'); k('s_mov_b32 s73, 0')
def w1_issue():
    for gu in range(2):
        for t in range(3):
            k('s_add_u32 m0, s73, %d'%(LWU*gu+1024*t)); k('buffer_load_dwordx4 v%d, s[%d:%d], s72 offen lds'%(66+t,52+4*gu,55+4*gu))
    k('s_add_u32 s72, s72, %d'%(32*3072)); k('s_add_u32 s73, s73, 3072')
k('s_mov_b32 s64, 0xffff0000')
for i in range(4): k('v_mov_b32 v%d, 0'%(56+i))
k('v_lshrrev_b32 v69, 3, v1'); k('v_lshlrev_b32 v69, 3, v69')
k('s_waitcnt vmcnt(1)')
stamp('cv0')
tdbg=k('buffer_load_dword v70, v69, s[60:63], 0 offen sc1')
w1_issue(); w1_issue()
k('v_bfe_u32 v72, v1, 2, 2'); k('v_lshrrev_b32 v73, 4, v1'); k('v_lshl_add_u32 v72, v73, 2, v72'); k('v_and_b32 v73, 3, v1')
k('s_cmp_ge_u32 s2, 192'); k('s_cbranch_scc1 L_nowd2')
k('v_mul_u32_u24 v6, 160, v72'); k('v_lshl_add_u32 v6, v73, 3, v6'); k('v_add_u32 v6, %d, v6'%LST)
rd={}; sv=k.nv
for e in range(2):
    for nb in range(5):
        for hh in range(2): rd[e,nb]=k('ds_read_b64_tr_b16 %s, v6 offset:%d'%(v2(104+20*e+4*nb+2*hh),5120*e+2560*hh+32*nb))
for e in range(2):
    for nb in range(5):
        k.need(rd[e,nb])
        if nb==4: k('s_add_u32 s%d, s%d, 4096'%(70+e,70+e))
        k('buffer_store_dwordx4 %s, v7, %s, s%d offen offset:%d sc1'%(v4(104+20*e+4*nb),WS,70+e,1024*(nb%4)))
k.nv=sv
k('L_nowd2:')
for t in range(10):
    for j in range(4):
        r=16+4*t+j; T=10 if j&1 else 8
        k('v_lshlrev_b32 v%d, 16, v%d'%(T,r)); k('v_and_b32 v%d, s64, v%d'%(T+1,r))
        k('v_pk_add_f32 v[56:57], v[56:57], %s'%v2(T)); k('v_pk_fma_f32 v[58:59], %s, %s, v[58:59]'%(v2(T),v2(T)))
k('v_add_f32 v56, v56, v57'); k('v_add_f32 v58, v58, v59')
for m in ('quad_perm:[1,0,3,2]','quad_perm:[2,3,0,1]','row_half_mirror'):
    k('v_add_f32_dpp v56, v56, v56 %s row_mask:0xf bank_mask:0xf'%m); k('v_add_f32_dpp v58, v58, v58 %s row_mask:0xf bank_mask:0xf'%m)
k('v_mul_f32 v56, 0x%x, v56'%INV); k('v_mul_f32 v58, 0x%x, v58'%INV)
k('v_fma_f32 v58, -v56, v56, v58'); k('v_max_f32 v58, 0, v58'); k('v_add_f32 v58, 0x%x, v58'%EPS); k('v_rsq_f32 v58, v58')
k('v_lshlrev_b32 v6, 2, v2'); k('v_add_u32 v6, %d, v6'%(LCNT+64))
k('v_mul_f32_e64 v56, -v56, v58')
k('ds_write_b32 v6, v58'); k('ds_write_b32 v6, v56 offset:32')
k('v_and_b32 v6, 3, v1'); k('v_lshlrev_b32 v8, 4, v6'); k('v_add_u32 v8, %d, v8'%(LCNT+64))
t=k('ds_read_b128 v[56:59], v8')
k('v_and_b32 v8, 1, v1'); k('v_lshlrev_b32 v8, 4, v8'); k('v_lshrrev_b32 v6, 1, v6'); k('v_lshl_add_u32 v8, v6, 13, v8')
k('s_lshl_b32 s65, s2, 5'); k('s_add_u32 s65, s65, 0x%x'%QR)
k.need(t)
k('s_mov_b64 exec, 15'); k('buffer_store_dwordx4 v[56:59], v8, %s, s65 offen sc1'%WS); k('s_mov_b64 exec, -1')
w1_issue()
stamp('Acomp')
k('v_mul_u32_u24 v4, 96, v72'); k('v_lshl_add_u32 v4, v73, 3, v4'); k('v_add_u32 v5, %d, v4'%LWU)
k('s_mov_b32 s66, 0x3f803f80')
for i in range(4): k('v_mov_b32 v%d, s66'%(12+i))
for i in range(24): k('v_mov_b32 v%d, 0'%(80+i))
k('v_lshrrev_b32 v6, 3, v1'); k('v_and_b32 v8, 7, v1'); k('v_lshlrev_b32 v8, 4, v8'); k('v_lshl_add_u32 v6, v6, 9, v8'); k('s_mov_b32 s68, 0x%x'%(FLG+128))
for i in range(4): k('v_mov_b32 v%d, 0'%(40+i))
k('s_mov_b32 s69, 0'); k('s_mov_b32 s67, 0')
k('s_waitcnt vmcnt(6)')
k('v_cmp_eq_u32 vcc, 0, v70'); k('s_cbranch_vccz L_dbgok')
poll(['buffer_load_dword v70, v69, s[60:63], 0 offen sc1'],['v_cmp_eq_u32 vcc, 0, v70'])
k('L_dbgok:')
k('s_lshl_b32 s76, s4, 3'); k('v_readlane_b32 s6, v70, s76')
k('v_add_u32 v70, 1, v70'); k('s_add_u32 s78, s6, 1'); k('v_mov_b32 v8, s78'); k('v_mov_b32 v9, 0')
flag_addr(128)
k('s_mov_b64 exec, 1'); k('buffer_store_dword v8, v9, %s, s77 offen sc1'%WS); k('s_mov_b64 exec, -1')
stamp('Adrain')
W1D=OPT.get('w1d',2)
for i in range(W1D-1): w1_issue()
k('L_w1:')
k('s_cmp_ge_u32 s67, %d'%(18-W1D)); k('s_cbranch_scc1 L_w1n')
k('s_waitcnt vmcnt(%d)'%(6*(W1D-1)))
k('s_cmp_lg_u32 s69, 0'); k('s_cbranch_scc1 L_w1i')
k('s_cmp_lt_u32 s67, %d'%OPT.get('g0s',4)); k('s_cbranch_scc1 L_w1i')
K_(g0_chk(40,70))
k('s_cbranch_vccnz L_w1g')
k('s_mov_b32 s69, 1'); lds_set(C_G0,'1',44)
stamp('cv9')
k('s_branch L_w1i')
k('L_w1g:'); k('buffer_load_dwordx4 v[40:43], v6, %s, s68 offen sc1'%WS)
k('L_w1i:')
w1_issue()
k('s_branch L_w1m')
k('L_w1n:'); k('s_waitcnt vmcnt(0)')
k('L_w1m:')
for p in range(3):
    for gu in range(2):
        for hh in range(2): k('ds_read_b64_tr_b16 %s, v%d offset:%d'%(v2(16+4*(2*p+gu)+2*hh),4+gu,1536*hh+32*p))
k('v_add_u32 v4, 3072, v4'); k('v_add_u32 v5, 3072, v5')
k('s_waitcnt lgkmcnt(0)')
for b in range(6): k('v_mfma_f32_16x16x32_bf16 %s, %s, v[12:15], %s'%(v4(80+4*b),v4(16+4*b),v4(80+4*b)))
k('s_add_u32 s67, s67, 1'); k('s_cmp_lt_u32 s67, 20'); k('s_cbranch_scc1 L_w1')
stamp('conv')
k('s_cmp_lg_u32 s69, 0'); k('s_cbranch_scc1 L_g0d')
poll(['buffer_load_dwordx4 v[40:43], v6, %s, s68 offen sc1'%WS],g0_chk(40,70))
lds_set(C_G0,'1',44)
k('L_g0d:')
k('v_lshrrev_b32 v6, 4, v1'); k('v_lshlrev_b32 v6, 4, v6'); k('s_lshl_b32 s65, s2, 9'); k('s_add_u32 s65, s65, 0x%x'%CS)
k('s_mov_b32 s66, 0x00010001'); k('s_nop 7'); k('s_mov_b32 exec_lo, s66'); k('s_mov_b32 exec_hi, s66')
for b in range(6): k('buffer_store_dwordx4 %s, v6, %s, s65 offen offset:%d'%(v4(80+4*b),WS,64*b))
k('s_mov_b64 exec, -1')
mode_wait(8)
k('v_and_b32 v30, 7, v1'); k('v_lshlrev_b32 v30, 5, v30'); k('ds_bpermute_b32 v31, v30, v70'); k('s_waitcnt lgkmcnt(0)')
if OPT.get('pt',1):
    k('s_cmp_lg_u32 s12, 1'); k('s_cbranch_scc1 L_nopt')
    K_(['v_lshrrev_b32 v27, 4, v1','s_mov_b32 s76, 49152','v_mul_lo_u32 v27, v27, s76','v_and_b32 v28, 7, v1','v_lshl_add_u32 v27, v28, 7, v27',
       'v_bfe_u32 v28, v1, 3, 1','s_and_b32 s76, s5, 1','s_lshl_b32 s76, s76, 1','s_sub_u32 s76, s76, 1','v_mul_lo_u32 v28, v28, s76','v_lshl_add_u32 v27, v28, 10, v27',
       's_lshr_b32 s76, s5, 1','s_mul_i32 s76, s76, 3072','s_mul_i32 s77, s4, %d'%(16*49152),'s_add_u32 s76, s76, s77','v_add_u32 v27, 1024, v27'])
    for H in (H1,H2):
        for w in range(4):
            k('s_add_u32 s77, s76, %d'%(H+4*49152*w)); k('buffer_load_dword v28, v27, %s, s77 offen sc1'%WS)
    k('s_lshl_b32 s76, s4, 2'); k('s_lshr_b32 s77, s5, 3'); k('s_add_u32 s76, s76, s77'); k('s_mul_i32 s76, s76, 81920')
    k('s_and_b32 s77, s5, 7'); k('s_mul_i32 s77, s77, 10240'); k('s_add_u32 s76, s76, s77'); k('s_add_u32 s76, s76, %d'%X3)
    k('v_lshlrev_b32 v27, 7, v1'); k('buffer_load_dword v28, v27, %s, s76 offen sc1'%WS)
    k('v_and_b32 v27, 15, v1'); k('v_lshlrev_b32 v27, 7, v27'); k('s_add_u32 s76, s76, 8192'); k('buffer_load_dword v28, v27, %s, s76 offen sc1'%WS)
    k('L_nopt:')
wdf_base()
wdf_rest(wdf_loads(7),OPT.get('wdepl',10))
stamp('convdr')

k('L_pre:')
k.reset_counts()
ACC=32; XS=[128,144]; WF=160; SA=184; ONE=188; STL=192; CSR=224
k('s_lshl_b32 s64, s3, 13'); k('s_add_u32 s64, s64, %d'%LR)
k('v_lshrrev_b32 v12, 3, v1'); k('v_bfe_u32 v13, v12, 1, 2'); k('v_lshlrev_b32 v13, 1, v13'); k('v_and_b32 v14, 7, v1'); k('v_xor_b32 v13, v14, v13')
k('v_lshlrev_b32 v13, 4, v13'); k('v_lshl_add_u32 v2, v12, 7, v13')
k('v_xor_b32 v13, v14, v12'); k('v_lshlrev_b32 v13, 4, v13'); k('v_lshl_add_u32 v3, v12, 7, v13')
k('s_lshl_b32 s65, s4, 2'); k('s_add_u32 s65, s65, s3'); k('s_mul_i32 s65, s65, 81920'); k('s_add_u32 s65, s65, s14')
k('s_lshr_b32 s66, s5, 3')
for i in range(4):
    k('s_add_u32 s72, s66, %d'%i); k('s_and_b32 s72, s72, 3'); k('s_mul_i32 s72, s72, 20480'); k('s_add_u32 s%d, s72, s65'%(67+i))
k('v_bfe_u32 v10, v1, 2, 2'); k('v_lshrrev_b32 v11, 4, v1'); k('v_lshl_add_u32 v10, v11, 2, v10'); k('v_and_b32 v11, 3, v1')
k('v_mul_u32_u24 v8, 96, v10'); k('v_lshl_add_u32 v8, v11, 3, v8')
k('s_and_b32 s72, s5, 1'); k('s_lshl_b32 s73, s72, 5'); k('s_xor_b32 s72, s72, 1'); k('s_lshl_b32 s72, s72, 6')
k('v_add_u32 v9, s72, v8'); k('v_add_u32 v8, s73, v8')
def wbases(it):
    r=16+4*(it&1)
    return ['s_add_u32 s72, s66, %d'%it,'s_and_b32 s72, s72, 3','s_mul_i32 s72, s72, 15360','v_add_u32 v%d, s72, v8'%r,'v_add_u32 v%d, s72, v9'%(r+1),
            's_add_u32 s72, s72, %d'%LWU,'v_add_u32 v%d, s72, v8'%(r+2),'v_add_u32 v%d, s72, v9'%(r+3)]
K_(wbases(0))
k('v_bfe_u32 v12, v10, 1, 2'); k('s_and_b32 s72, s5, 3'); k('v_xor_b32 v12, s72, v12'); k('v_lshlrev_b32 v12, 1, v12')
k('v_lshrrev_b32 v13, 1, v11'); k('v_and_b32 v14, 1, v11'); k('v_lshlrev_b32 v14, 3, v14'); k('v_lshl_add_u32 v14, v10, 7, v14'); k('v_add_u32 v14, s64, v14')
for q in range(4):
    k('v_add_u32 v15, %d, v13'%(2*q)); k('v_xor_b32 v15, v15, v12'); k('v_lshl_add_u32 v%d, v15, 4, v14'%(4+q))
k('s_mov_b32 s72, 0x3f803f80')
for i in range(4): k('v_mov_b32 v%d, s72'%(ONE+i))
def dma_pre(ks): return ['s_add_u32 m0, s64, %d'%((ks&1)*4096),'s_add_u32 s71, s%d, %d'%(67+ks//5,(ks%5)*4096)]
def dma(t): return 'buffer_load_dwordx4 v2, %s, s71 offen offset:%d%s lds'%(WS,1024*t,LP)
K_(dma_pre(0))
k('s_cmp_eq_u32 s13, 1'); k('s_cbranch_scc1 L_s6')
k('s_cmp_lg_u32 s3, 3'); k('s_cbranch_scc1 L_s2b')
k('v_and_b32 v28, 7, v1'); k('v_lshlrev_b32 v28, 2, v28'); k('s_lshl_b32 s77, s4, 9'); k('s_add_u32 s77, s77, 0x%x'%(FLG+256))
poll(['buffer_load_dword v29, v28, %s, s77 offen sc1'%WS], ['v_cmp_ne_u32 vcc, v31, v29'])
k('s_branch L_s2b')
k('L_s6:')
k('s_waitcnt vmcnt(0) lgkmcnt(0)'); k('s_barrier')
k('s_cmp_lg_u32 s3, 0'); k('s_cbranch_scc1 L_s2b')
island_flag_store('4',28); island_poll('4',28)
k('L_s2b:')
k('s_waitcnt vmcnt(0) lgkmcnt(0)')
k('s_barrier')
stamp('G1in',True)
if OPT['stop']<=1: k('s_branch L_fin')

T={}
for t in range(4): T['d',0]=k(dma(t))
K_(dma_pre(1))
for t in range(4): T['d',1]=k(dma(t))
def wr(ks,b):
    p=b>>1; gu=b&1
    base=16+4*((ks//5)&1)+2*gu+(1 if p==2 else 0); off=(ks%5)*3072+(32*p if p<2 else 0)
    return ['ds_read_b64_tr_b16 %s, v%d offset:%d'%(v2(WF+4*b+2*hh),base,off+1536*hh) for hh in range(2)]
for b in range(5):
    for x in wr(0,b): T['w',0,b]=k(x)
K_(dma_pre(2))
def xr(ks,q): return ['ds_read_b64_tr_b16 %s, v%d offset:%d'%(v2(XS[ks&1]+4*q+2*hh),4+q,(ks&1)*4096+2048*hh) for hh in range(2)]
k.need(T['d',0])
for q in range(4):
    for x in xr(0,q): T['x',0]=k(x)
stamp('G1pro',True)
def st_loads():
    o=[]
    for q in range(4):
        o+=['s_xor_b32 s76, s75, %d'%q,'s_lshl_b32 s76, s76, 9','s_add_u32 s76, s76, s74',
            'buffer_load_dwordx4 %s, v24, %s, s76 offen sc1'%(v4(STL+8*q),WS),'buffer_load_dwordx4 %s, v24, %s, s76 offen offset:16 sc1'%(v4(STL+8*q+4),WS)]
    return o
def publish_stats():
    o=[]
    for msk,r in (('0x22222222',1),('0x44444444',2),('0x88888888',3)):
        o+=['s_mov_b32 s72, %s'%msk,'s_mov_b32 s73, s72','v_cndmask_b32 v25, v%d, v%d, s[72:73]'%(SA if r==1 else 25,SA+r)]
    o+=['s_lshl_b32 s74, s4, 4','s_lshl_b32 s75, s3, 2','s_add_u32 s74, s74, s75','s_lshl_b32 s74, s74, 9','s_add_u32 s74, s74, s42',
        's_and_b32 s75, s5, 3','s_lshl_b32 s76, s75, 9','s_add_u32 s76, s76, s74','s_bfe_u32 s77, s5, 0x10002','s_lshl_b32 s77, s77, 4','s_add_u32 s76, s76, s77',
        's_lshl_b32 s77, s66, 2','s_add_u32 s76, s76, s77','v_and_b32 v24, 15, v1','v_lshlrev_b32 v24, 5, v24']
    o=[S(x) for x in o]
    def st():
        k('s_mov_b32 exec_lo, 0x00f0000f'); k('s_mov_b32 exec_hi, 0xf0000f00')
        hstore(['buffer_store_dword v25, v24, %s, s76 offen'%WS])
        k('s_mov_b64 exec, -1')
    return o+[st]
cs_l=['v_lshrrev_b32 v26, 4, v1','v_lshlrev_b32 v26, 4, v26','s_lshl_b32 s76, s2, 9','s_add_u32 s76, s76, 0x%x'%CS,
      's_and_b32 s77, s5, 1','s_lshl_b32 s78, s77, 7','s_add_u32 s78, s78, s76','s_xor_b32 s77, s77, 1','s_lshl_b32 s77, s77, 8','s_add_u32 s77, s77, s76']
cs_l+=['buffer_load_dwordx4 %s, v26, %s, %s offen offset:%d'%(v4(CSR+4*b),WS,'s78' if b<4 else 's77',64*(b%4)) for b in range(6)]
PQ=248
PQs=[248,252,24,28]
chk=['v_max3_u32 v22, v%d, v%d, v%d'%(STL,STL+1,STL+2)]
for i in range(3,31,2): chk.append('v_max3_u32 v22, v22, v%d, v%d'%(STL+i,STL+i+1))
chk+=['v_max_u32 v22, v22, v%d'%(STL+31),'v_cmp_eq_u32 vcc, -1, v22']
CA=-2*0.7978845608028654*1.4426950408889634
def tile_dma():
    o=['s_lshl_b32 s76, s4, 2','s_lshr_b32 s77, s5, 3','s_add_u32 s76, s76, s77','s_mul_i32 s76, s76, 81920','s_and_b32 s77, s5, 7','s_mul_i32 s77, s77, 10240','s_add_u32 s43, s76, s77',
       's_bitcmp1_b32 s3, 1','s_cselect_b32 s76, 0x%x, s14'%YB,'s_add_u32 s76, s76, s43','s_and_b32 s77, s3, 1','s_mul_i32 s77, s77, 5120','s_add_u32 s76, s76, s77','s_mov_b32 m0, s64']
    return o
extra={5:publish_stats()[:12],6:publish_stats()[12:],10:[S(x) for x in cs_l[:10]],11:[S(x) for x in cs_l[10:]],
       15:[S(x) for x in st_loads()[:10]],16:[S(x) for x in st_loads()[10:]],18:[S(x) for x in tile_dma()]}
for ks in range(20):
    gaps=[[] for _ in range(24)]
    def put(g,key,x): gaps[g].append((key,x))
    for hh in range(2): put(hh,('w',ks,5),wr(ks,5)[hh])
    if ks+2<20:
        for t,g in enumerate((2,3,6,7)): put(g,('d',ks+2),dma(t))
    if ks+3<20:
        for x,g in zip(dma_pre(ks+3),(22,23)): put(g,None,x)
    if ks+1<20:
        for b in range(5):
            for hh in range(2): put(4*b+4+hh,('w',ks+1,b),wr(ks+1,b)[hh])
        for i in range(8): put(10+i,('x',ks+1,i),xr(ks+1,i>>1)[i&1])
    if ks==19:
        for t in range(4): put(2+2*t,None,'buffer_load_dwordx4 v3, %s, s76 offen offset:%d sc1 lds'%(WS,1024*t))
        put(9,None,'s_add_u32 m0, s64, 4096'); put(10,None,'s_add_u32 s76, s76, 4096'); put(11,None,'buffer_load_dwordx4 v3, %s, s76 offen sc1 lds'%WS)
        for g,x in zip(range(4,24),chk[:-1]): put(g,'st',x)
    ex=list(extra.get(ks,[]))
    if ks%5==2 and ks<15: ex+=[S(x) for x in wbases(ks//5+1)]
    free=[18,19,22,23,4,5,8,9,20,21,2,3,6,7,0,1]
    for g,f in zip(sorted(free[:max(len(ex),1)]),ex): put(g,'f',f)
    i=0
    for b in range(6):
        for q in (range(4) if (b&1)==0 else range(3,-1,-1)):
            if i==0: k.need(T['x',ks],T['w',ks,0],T['w',ks,3])
            if i==16: k.need(T['w',ks,4],T['w',ks,5])
            acc=ACC+4*(6*q+b)
            k('v_mfma_f32_16x16x32_bf16 %s, %s, %s, %s'%(v4(acc),v4(WF+4*b),v4(XS[ks&1]+4*q),'0' if ks==0 else v4(acc)))
            if ks<5 and i==19:
                l1=k.lab('Lsq'); l2=k.lab('Lsd'); cc='0' if ks==0 else v4(SA); X0=XS[ks&1]
                k('s_bitcmp1_b32 s5, 2'); k('s_cbranch_scc0 %s'%l1)
                k('v_mfma_f32_16x16x32_bf16 %s, %s, %s, %s'%(v4(SA),v4(ONE),v4(X0),cc)); k('s_branch %s'%l2)
                k(l1+':'); k('v_mfma_f32_16x16x32_bf16 %s, %s, %s, %s'%(v4(SA),v4(X0),v4(X0),cc)); k(l2+':')
            for key,x in gaps[i]:
                if key=='f': x(); continue
                if key=='st': k(x); continue
                if key and key[0]=='x' and key[2]==0: k.need(T['d',ks+1])
                t=k(x)
                if key and t: T[key[:2] if key[0]=='x' else key]=t
            i+=1
    if ks==4: stamp('G1i0',True)
stamp('G1',True)
k(chk[-1])
k('s_cbranch_vccz L_stok')
poll(st_loads(),chk)
k('L_stok:')
PQ=128
for q in range(4):
    s=STL+8*q
    k('v_pk_add_f32 %s, %s, %s'%(v2(s),v2(s),v2(s+2))); k('v_pk_add_f32 %s, %s, %s'%(v2(s+4),v2(s+4),v2(s+6)))
for q in range(4):
    s=STL+8*q
    k('v_add_f32 v%d, v%d, v%d'%(s,s,s+1)); k('v_add_f32 v%d, v%d, v%d'%(s+4,s+4,s+5))
for q in range(4):
    s=STL+8*q; p=PQ+4*q
    k('v_mul_f32 v%d, 0x%x, v%d'%(p,INV^0x80000000,s+4)); k('v_mul_f32 v%d, 0x%x, v%d'%(s,INV,s))
for q in range(4):
    s=STL+8*q; p=PQ+4*q
    k('v_fma_f32 v%d, -v%d, v%d, v%d'%(s,p,p,s)); k('v_max_f32 v%d, 0, v%d'%(s,s)); k('v_add_f32 v%d, 0x%x, v%d'%(p+1,EPS,s))
for q in range(4): k('v_rsq_f32 v%d, v%d'%(STL+8*q,PQ+4*q+1))
for q in range(4):
    s=STL+8*q; p=PQ+4*q
    k('v_mul_f32 v%d, 0x%x, v%d'%(p+2,fb(CA),s)); k('v_mul_f32 v%d, v%d, v%d'%(s+1,s,s))
for q in range(4):
    s=STL+8*q; p=PQ+4*q
    k('v_mul_f32 v%d, 0x%x, v%d'%(s+1,fb(0.044715),s+1)); k('v_mul_f32 v%d, v%d, v%d'%(p+3,p+2,s+1))
k('v_lshlrev_b32 v2, 4, v1'); k('s_and_b32 s74, s5, 1'); k('s_lshl_b32 s75, s74, 3'); k('v_add_u32 v21, s75, v2')
k('s_lshr_b32 s75, s5, 1'); k('s_mul_i32 s75, s75, 3072'); k('s_add_u32 s75, s75, s15')
k('s_lshl_b32 s76, s4, 4'); k('s_lshl_b32 s77, s3, 2'); k('s_add_u32 s76, s76, s77'); k('s_mul_i32 s76, s76, 49152'); k('s_add_u32 s75, s75, s76')
k('s_lshl_b32 s74, s74, 11'); k('s_and_b32 s76, s5, 3')
TMP=144
for q in range(4):
    p=PQ+4*q; o=STL+8*(q&1)
    items=[(pp,h2) for pp in range(3) for h2 in range(2)]
    G=lambda pp,h2: ACC+4*(6*q+2*pp)+2*h2
    U=lambda pp,h2: ACC+4*(6*q+2*pp+1)+2*h2
    t=lambda i: TMP+2*i
    for i,(pp,h2) in enumerate(items): k('v_pk_fma_f32 %s, %s, %s, %s op_sel_hi:[0,1,1]'%(v2(G(pp,h2)),v2(p),v2(CSR+8*pp+2*h2),v2(G(pp,h2))))
    for i,(pp,h2) in enumerate(items): k('v_pk_mul_f32 %s, %s, %s'%(v2(t(i)),v2(G(pp,h2)),v2(G(pp,h2))))
    for i,(pp,h2) in enumerate(items): k('v_pk_fma_f32 %s, %s, %s, %s op_sel:[0,1,0] op_sel_hi:[1,1,0]'%(v2(t(i)),v2(t(i)),v2(p+2),v2(p+2)))
    for i,(pp,h2) in enumerate(items): k('v_pk_mul_f32 %s, %s, %s'%(v2(t(i)),v2(t(i)),v2(G(pp,h2))))
    for i,(pp,h2) in enumerate(items):
        k('v_exp_f32 v%d, v%d'%(t(i),t(i))); k('v_exp_f32 v%d, v%d'%(t(i)+1,t(i)+1))
        k('v_pk_fma_f32 %s, %s, %s, %s op_sel_hi:[0,1,1]'%(v2(U(pp,h2)),v2(p),v2(CSR+8*pp+4+2*h2),v2(U(pp,h2))))
    for i,(pp,h2) in enumerate(items): k('v_pk_fma_f32 %s, %s, %s, %s op_sel:[0,1,1] op_sel_hi:[1,1,1]'%(v2(t(i)),v2(t(i)),v2(p),v2(p)))
    for i,(pp,h2) in enumerate(items):
        k('v_rcp_f32 v%d, v%d'%(t(i),t(i))); k('v_rcp_f32 v%d, v%d'%(t(i)+1,t(i)+1))
        k('v_pk_mul_f32 %s, %s, %s'%(v2(G(pp,h2)),v2(G(pp,h2)),v2(U(pp,h2))))
    for i,(pp,h2) in enumerate(items): k('v_pk_mul_f32 %s, %s, %s'%(v2(G(pp,h2)),v2(G(pp,h2)),v2(t(i))))
    for i,(pp,h2) in enumerate(items): k('v_cvt_pk_bf16_f32 v%d, v%d, v%d'%(o+i,G(pp,h2),G(pp,h2)+1))
    k('s_xor_b32 s77, s76, %d'%q); k('s_mul_i32 s77, s77, 49152'); k('s_add_u32 s77, s77, s75'); k('s_add_u32 s78, s77, s74')
    hstore(['buffer_store_dwordx4 %s, v2, %s, s78 offen'%(v4(o),WS),'buffer_store_dwordx2 %s, v21, %s, s77 offen offset:1024'%(v2(o+4),WS)])
stamp('G1epi',True)
A2=16; HF=96; NFR=24; P1=192; P2=212; RES=232; YY=242; P3=192
k('s_lshl_b32 s64, s4, 2'); k('s_lshr_b32 s65, s5, 3'); k('s_add_u32 s64, s64, s65')
k('s_and_b32 s69, s5, 7')
k('s_mul_i32 s66, s64, %d'%(4*49152)); k('s_mul_i32 s67, s3, 12288'); k('s_add_u32 s66, s66, s67'); k('s_add_u32 s66, s66, s15')
for sl in range(3):
    k('s_add_u32 s71, s3, %d'%(sl+1)); k('s_and_b32 s71, s71, 3'); k('s_mul_i32 s%d, s71, 49152'%(60+sl)); k('s_add_u32 s%d, s%d, s66'%(60+sl,60+sl))
    k('s_mul_i32 s71, s71, 5120'); k('s_add_u32 s71, s71, %d'%(LR+(20480 if sl==1 else 0))); k('v_add_u32 v%d, s71, v2'%(4+sl))
k('s_mul_i32 s63, s3, 49152'); k('s_add_u32 s63, s63, s66')
k('s_mul_i32 s71, s3, 5120'); k('s_add_u32 s71, s71, %d'%LR); k('v_add_u32 v7, s71, v2')
k('v_and_b32 v8, 15, v1'); k('v_lshrrev_b32 v9, 4, v1')
k('v_lshrrev_b32 v10, 1, v9'); k('s_lshl_b32 s71, s3, 1'); k('v_add_u32 v10, s71, v10'); k('v_and_b32 v11, 7, v8'); k('v_xor_b32 v10, v10, v11')
k('v_lshlrev_b32 v10, 4, v10'); k('v_and_b32 v11, 1, v9'); k('v_lshl_add_u32 v10, v11, 3, v10'); k('v_lshl_add_u32 v10, v8, 7, v10'); k('v_add_u32 v14, %d, v10'%LR)
k('v_bfe_u32 v11, v8, 3, 1'); k('v_mul_u32_u24 v11, 3072, v11'); k('v_add_u32 v15, v14, v11')
k('s_mov_b32 s71, 0xffff0000')
k('s_waitcnt vmcnt(0) lgkmcnt(0)'); k('s_barrier')
for which,dst in ((0,RES),(1,YY)):
    for nb in range(5):
        k('ds_read_b64 %s, v%d offset:%d'%(v2(dst+2*nb),15 if nb==2 else 14,16384*which+2048*nb+(3072 if nb>2 else 0)))
k('s_cmp_lg_u32 s3, 0'); k('s_cbranch_scc1 L_s4b')
k('s_lshl_b32 s68, s13, 1'); k('s_add_u32 s68, s68, 3')
island_flag_store('s68',16); island_poll('s68',16)
k('L_s4b:')
k('s_waitcnt lgkmcnt(0)'); k('s_barrier')
stamp('S4',True)
if OPT['stop']<=2: k('s_branch L_fin')

k.reset_counts()
LOOK=OPT.get('look',8)
TH={}
def hload(n):
    sl,i=divmod(n,12)
    if i%4==0 and i: k('s_add_u32 s%d, s%d, 4096'%(60+sl,60+sl))
    TH[n]=k('buffer_load_dwordx4 %s, v2, %s, s%d offen offset:%d%s'%(v4(HF+4*(n%NFR)),WS,60+sl,1024*(i%4),LP))
for n in range(LOOK): hload(n)
def run(sl,fill,cin=None,start=2):
    i=0
    for kap in range(12):
        n=12*sl+kap
        for nb in range(5):
            acc=A2+20*sl+4*nb
            c=v4(acc) if kap else ('0' if cin is None else v4(cin+4*nb))
            k.need(TH[n])
            k('v_mfma_f32_16x16x32_bf16 %s, %s, %s, %s'%(v4(acc),v4(HF+4*(n%NFR)),a4(4*(5*kap+nb)),c))
            if nb==0 and n+LOOK<48: hload(n+LOOK)
            elif i>=start and fill: fill.pop(0)()
            i+=1
    for f in fill: f()
def wr_acc(sl): return [S('ds_write_b128 v%d, %s offset:%d'%(4+sl,v4(A2+20*sl+4*nb),1024*nb)) for nb in range(5)]
def rd_part(dst,off,key):
    o=[]
    for nb in range(5):
        def f(nb=nb): TH[key]=k('ds_read_b128 %s, v7 offset:%d'%(v4(dst+4*nb),off+1024*nb))
        o.append(f)
    return o
stamp('G2pro',True)
run(0,[])
stamp('G2s0',True)
run(1,wr_acc(0),start=5)
k('s_waitcnt lgkmcnt(0)'); k('s_barrier')
stamp('G2s1',True)
f=rd_part(P1,0,'p1')+wr_acc(1)
for nb in range(5):
    for h2 in range(2):
        r=RES+2*nb+h2
        def f1(nb=nb,h2=h2):
            k.need(TH['p1']); k('v_pk_add_f32 %s, %s, v[10:11]'%(v2(P1+4*nb+2*h2),v2(P1+4*nb+2*h2)))
        f+=[S('v_lshlrev_b32 v10, 16, v%d'%r),S('v_and_b32 v11, s71, v%d'%r),f1]
run(2,f,start=0)
k('s_waitcnt lgkmcnt(0)'); k('s_barrier')
stamp('G2s2',True)
YF=96
f=rd_part(P2,20480,'p2')+wr_acc(2)
run(3,f,cin=P1,start=0)
k('s_waitcnt lgkmcnt(0)'); k('s_barrier')
for ff in rd_part(P3,0,'p3'): ff()
V=A2+60
for nb in range(5):
    for h2 in range(2): k('v_pk_add_f32 %s, %s, %s'%(v2(V+4*nb+2*h2),v2(V+4*nb+2*h2),v2(P2+4*nb+2*h2)))
k.need(TH['p3'])
for nb in range(5):
    for h2 in range(2): k('v_pk_add_f32 %s, %s, %s'%(v2(V+4*nb+2*h2),v2(V+4*nb+2*h2),v2(P3+4*nb+2*h2)))
stamp('G2',True)
k('s_cmp_eq_u32 s13, 1'); k('s_cbranch_scc1 L_out')
SS=16
for h2 in range(2):
    k('v_pk_add_f32 %s, %s, %s'%(v2(SS+2*h2),v2(V+2*h2),v2(V+4+2*h2))); k('v_pk_mul_f32 %s, %s, %s'%(v2(SS+4+2*h2),v2(V+2*h2),v2(V+2*h2)))
for nb in range(1,5):
    for h2 in range(2):
        if nb>1: k('v_pk_add_f32 %s, %s, %s'%(v2(SS+2*h2),v2(SS+2*h2),v2(V+4*nb+2*h2)))
        k('v_pk_fma_f32 %s, %s, %s, %s'%(v2(SS+4+2*h2),v2(V+4*nb+2*h2),v2(V+4*nb+2*h2),v2(SS+4+2*h2)))
for sh in (8,4,2,1):
    for i in range(8): k('v_add_f32_dpp v%d, v%d, v%d row_ror:%d row_mask:0xf bank_mask:0xf'%(SS+i,SS+i,SS+i,sh))
k('s_lshl_b32 s70, s64, 2'); k('s_add_u32 s70, s70, s3'); k('s_lshl_b32 s70, s70, 10'); k('s_add_u32 s70, s70, 0x%x'%EX)
k('s_lshl_b32 s72, s69, 5'); k('s_add_u32 s72, s72, s70'); k('v_lshlrev_b32 v10, 8, v9')
k('s_mov_b32 s73, 0x00010001'); k('s_mov_b32 exec_lo, s73'); k('s_mov_b32 exec_hi, s73')
hstore(['buffer_store_dwordx4 %s, v10, %s, s72 offen'%(v4(SS),WS),'buffer_store_dwordx4 %s, v10, %s, s72 offen offset:16'%(v4(SS+4),WS)])
k('s_mov_b64 exec, -1')
k('v_and_b32 v11, 7, v1'); k('v_lshl_add_u32 v10, v11, 5, v10'); k('v_bfe_u32 v11, v1, 3, 1'); k('v_lshl_add_u32 v10, v11, 4, v10')
YF=32
for nb in range(5):
    for h2 in range(2):
        k('v_lshlrev_b32 v%d, 16, v%d'%(YF+4*nb+2*h2,YY+2*nb+h2)); k('v_and_b32 v%d, s71, v%d'%(YF+4*nb+2*h2+1,YY+2*nb+h2))
poll(['buffer_load_dwordx4 v[24:27], v10, %s, s70 offen sc1'%WS],['v_max_u32 v12, v24, v25','v_max3_u32 v12, v12, v26, v27','v_cmp_eq_u32 vcc, -1, v12'])
for m in ('quad_perm:[1,0,3,2]','quad_perm:[2,3,0,1]','row_half_mirror'):
    for i in range(4): k('v_add_f32_dpp v%d, v%d, v%d %s row_mask:0xf bank_mask:0xf'%(24+i,24+i,24+i,m))
k('v_cmp_eq_u32 vcc, 0, v11')
for i in range(4): k('v_mov_b32_dpp v%d, v%d row_ror:8 row_mask:0xf bank_mask:0xf'%(28+i,24+i))
for i in range(4): k('v_cndmask_b32 v%d, v%d, v%d, vcc'%(SS+i,28+i,24+i))
for i in range(4): k('v_cndmask_b32 v%d, v%d, v%d, vcc'%(SS+4+i,24+i,28+i))
k('s_mov_b32 s72, 0x%x'%INV); k('s_mov_b32 s73, s72')
for i in range(4): k('v_pk_mul_f32 %s, %s, s[72:73]'%(v2(SS+2*i),v2(SS+2*i)))
for i in range(4): k('v_fma_f32 v%d, -v%d, v%d, v%d'%(SS+4+i,SS+i,SS+i,SS+4+i))
for i in range(4): k('v_max_f32 v%d, 0, v%d'%(SS+4+i,SS+4+i))
for i in range(4): k('v_add_f32 v%d, 0x%x, v%d'%(SS+4+i,EPS,SS+4+i))
for i in range(4): k('v_rsq_f32 v%d, v%d'%(SS+4+i,SS+4+i))
for i in range(4): k('v_mul_f32_e64 v%d, -v%d, v%d'%(SS+i,SS+i,SS+4+i))
for nb in range(5):
    for h2 in range(2): k('v_pk_fma_f32 %s, %s, %s, %s'%(v2(52+4*nb+2*h2),v2(V+4*nb+2*h2),v2(SS+4+2*h2),v2(SS+2*h2)))
for nb in range(5):
    for h2 in range(2): k('v_pk_fma_f32 %s, %s, %s, %s'%(v2(V+4*nb+2*h2),v2(52+4*nb+2*h2),v2(YF+4*nb+2*h2),v2(V+4*nb+2*h2)))
    for h2 in range(2): k('v_cvt_pk_bf16_f32 v%d, v%d, v%d'%(52+2*nb+h2,V+4*nb+2*h2,V+4*nb+2*h2+1))
    k('ds_write_b64 v14, %s offset:%d'%(v2(52+2*nb),20480+2048*nb))
k('s_lshl_b32 s70, s3, 10'); k('s_add_u32 s72, s70, %d'%(LR+20480)); k('v_add_u32 v10, s72, v2')
k('s_add_u32 s70, s70, s43'); k('s_add_u32 s70, s70, %d'%X3); k('s_add_u32 s72, s70, 4096'); k('s_add_u32 s73, s70, 8192')
k('s_waitcnt lgkmcnt(0)'); k('s_barrier')
for t in range(3): k('ds_read_b128 %s, v10 offset:%d'%(v4(16+4*t),4096*t))
k('s_waitcnt lgkmcnt(1)')
hstore(['buffer_store_dwordx4 %s, v3, %s, %s offen'%(v4(16+4*t),WS,('s70','s72')[t]) for t in range(2)])
k('s_cmp_ge_u32 s3, 2'); k('s_cbranch_scc1 L_x3d')
k('s_waitcnt lgkmcnt(0)')
hstore(['buffer_store_dwordx4 %s, v3, %s, s73 offen'%(v4(24),WS)])
k('L_x3d:')
stamp('epi1')
if OPT['stop']<=3: k('s_branch L_fin')
k('s_mov_b32 s13, 1'); k('s_mov_b32 s14, 0x%x'%X3); k('s_mov_b32 s15, 0x%x'%H2); k('s_mov_b32 s42, 0x%x'%ST2)
k('s_branch L_pre')
k('L_out:')
k.reset_counts()
for nb in range(5):
    for h2 in range(2): k('v_cvt_pk_bf16_f32 v%d, v%d, v%d'%(16+2*nb+h2,V+4*nb+2*h2,V+4*nb+2*h2+1))
k('s_mul_i32 s67, s3, 5120'); k('s_add_u32 s67, s67, %d'%(LR+20480))
k('v_lshlrev_b32 v10, 5, v8'); k('v_lshl_add_u32 v10, v9, 3, v10'); k('v_add_u32 v10, s67, v10')
for nb in range(5): k('ds_write_b64 v10, %s offset:%d'%(v2(16+2*nb),512*nb))
k('v_bfe_u32 v11, v1, 2, 2'); k('v_and_b32 v12, 3, v1'); k('v_lshl_add_u32 v11, v9, 3, v11'); k('v_lshlrev_b32 v11, 5, v11'); k('v_lshl_add_u32 v11, v12, 3, v11'); k('v_add_u32 v11, s67, v11')
for t in range(3):
    for hh in range(2): tr=k('ds_read_b64_tr_b16 %s, v11 offset:%d'%(v2(32+4*t+2*hh),1024*t+128*hh))
k.srd(44,36,TB)
k('v_mul_u32_u24 v10, 208, v8'); k('v_lshl_add_u32 v10, v9, 4, v10'); k('v_add_u32 v10, s67, v10')
k('s_lshl_b32 s70, s64, 6'); k('s_lshl_b32 s72, s3, 4'); k('s_add_u32 s70, s70, s72'); k('s_mul_i32 s70, s70, 1280'); k('s_mul_i32 s72, s69, 160'); k('s_add_u32 s70, s70, s72')
for t in range(3):
    k('v_add_u32 v12, %d, v1'%(64*t)); k('v_mul_u32_u24 v13, 6554, v12'); k('v_lshrrev_b32 v13, 16, v13'); k('v_mul_u32_u24 v14, 10, v13'); k('v_sub_u32 v12, v12, v14')
    k('v_lshlrev_b32 v12, 4, v12'); k('v_mad_u32_u24 v%d, v13, s%d, v12'%(20+t,72)) if False else None
    k('v_mul_u32_u24 v14, 208, v13'); k('v_add3_u32 v%d, v14, v12, s67'%(16+t)); k('v_mul_u32_u24 v14, 1280, v13'); k('v_add3_u32 v%d, v14, v12, s70'%(20+t))
k.need(tr)
for t in range(3): k('ds_write_b128 v10, %s offset:%d'%(v4(32+4*t),64*t))
rr=[k('ds_read_b128 %s, v%d'%(v4(44+4*t),16+t)) for t in range(3)]
for t in range(3):
    k.need(rr[t])
    if t==2: k('s_mov_b32 exec_hi, 0')
    k('buffer_store_dwordx4 %s, v%d, s[44:47], 0 offen'%(v4(44+4*t),20+t))
k('s_mov_b64 exec, -1')
k('L_fin:')
if OPT['stamps']:
    k('s_waitcnt vmcnt(0)')
    stamp('end')
    k('s_memrealtime s[98:99]'); k('s_waitcnt lgkmcnt(0)'); k('v_writelane_b32 v0, s98, 63')
    k('s_lshl_b32 s70, s2, 2'); k('s_add_u32 s70, s70, s3'); k('s_lshl_b32 s70, s70, 8'); k('s_add_u32 s70, s70, 0x%x'%STAMP)
    k('v_lshlrev_b32 v2, 2, v1'); k('buffer_store_dword v0, v2, %s, s70 offen'%WS)
    json.dump(SN,open('stamps.json','w'))
k('L_end:')
k.end(NAME+'_kernel',512,100,256)
n=k.fix(verbose=bool(OPT.get('verbose')))
hdr=''.join(l for l in open('cdna_kernels/%s.s.ref'%NAME).readlines() if l.startswith(';') and '@launch' not in l and 'Override' not in l and 'grid=ceil' not in l)
open(sys.argv[1],'w').write(k.text(hdr))
print('instructions',sum(1 for i in k.ins if i.mn and not i.label),'nop states added',n)
```

```python
import sys, struct, json
from klib import K, I
NAME='interleave_layers__ssm_conv_h3__glu_gated_geglu__prompt'
OPT=dict(stamps=0, stop=99, fast=1)
for x in sys.argv[2:]:
    kx,vx=x.split('='); OPT[kx]=int(vx)
def fb(x): return struct.unpack('<I',struct.pack('<f',x))[0]

KVT=0x000000; QT=0x280000; X1=0x500000; YB=0x780000; X3=0xA00000; WDF=0xC80000
QR=0xE60000; QNM=0xE62000; ST1=0xE64000; ST2=0xE74000; EX=0xE84000; CS=0xEA4000
FLG=0xEC4000
H1=0x1000000; H2=0x1600000; STAMP=0x2000000
WSB=0x10000000; TB=2048*1280
LW=0; LWU=61440; LR=122880
LA=LR
LH=LR+24576
LCNT=LR+24576+3*4224
C_A=0; C_CV=4; C_MODE=8; C_S1=12; C_G0=16
SPIN=OPT.get('spin',1<<16)
INV=0x3acccccd
EPS=0x3727c5ac

k=K()
k.launch.append('; @launch grid=(256,1,1) block=(256,1,1) lds=163840')
k.begin(NAME+'_kernel')
SN={}
def stamp(name,lay=False):
    if OPT['stamps']:
        idx=SN.setdefault(name,len(SN))
        k('s_memtime s[98:99]'); k('s_waitcnt lgkmcnt(0)')
        if lay:
            k('s_mul_i32 s97, s13, 20'); k('s_add_u32 s97, s97, %d'%idx); k('s_mov_b32 s96, m0'); k('s_mov_b32 m0, s97'); k('v_writelane_b32 v0, s98, m0'); k('s_mov_b32 m0, s96')
        else: k('v_writelane_b32 v0, s98, %d'%idx)
def v4(r): return 'v[%d:%d]'%(r,r+3)
def v2(r): return 'v[%d:%d]'%(r,r+1)
def a4(r): return 'a[%d:%d]'%(r,r+3)
def S(x): return (lambda: k(x))
def K_(lst):
    for x in lst: t=k(x)
    return t
WS='s[8:11]'
LP=' sc1' if OPT.get('ldsc1',0) else ''

def hstore(instr):
    l1=k.lab('Lf'); l2=k.lab('Lg')
    k('s_cmp_eq_u32 s12, 1'); k('s_cbranch_scc1 %s'%l1)
    nv=k.nv
    for x in instr: k(x+' sc1')
    k('s_branch %s'%l2); k(l1+':')
    k.nv=nv
    for x in instr: t=k(x)
    k(l2+':')
    return t
def poll(loads, check):
    l=k.lab('Lpoll'); d=k.lab('Lpd')
    k('s_mov_b32 s79, 0'); k(l+':')
    for x in loads: k(x)
    k('s_waitcnt vmcnt(0)')
    for x in check: k(x)
    k('s_cbranch_vccz %s'%d)
    k('s_add_u32 s79, s79, 1'); k('s_cmp_lt_u32 s79, s80'); k('s_cbranch_scc1 %s'%l)
    k('s_mov_b32 s80, 0')
    k(d+':')
def flag_addr(line):
    k('s_lshl_b32 s77, s4, 9'); k('s_lshl_b32 s76, s5, 2'); k('s_add_u32 s77, s77, s76'); k('s_add_u32 s77, s77, 0x%x'%(FLG+line))
def island_flag_store(phase, tmp, line=0, sc1=False):
    k('s_add_u32 s78, s6, %s'%phase); k('s_add_u32 s78, s78, s59')
    k('v_mov_b32 v%d, s78'%tmp); k('v_mov_b32 v%d, 0'%(tmp+1))
    flag_addr(line)
    k('s_mov_b64 exec, 1')
    x='buffer_store_dword v%d, v%d, %s, s77 offen'%(tmp,tmp+1,WS)
    if sc1: k(x+' sc1')
    else: hstore([x])
    k('s_mov_b64 exec, -1')
def island_poll(phase, tmp, nmem=32, line=0):
    k('v_min_u32 v%d, %d, v1'%(tmp,nmem-1)); k('v_lshlrev_b32 v%d, 2, v%d'%(tmp,tmp))
    k('s_lshl_b32 s77, s4, 9'); k('s_add_u32 s77, s77, 0x%x'%(FLG+line))
    poll(['buffer_load_dword v%d, v%d, %s, s77 offen sc1'%(tmp+1,tmp,WS)],
         ['v_subrev_u32 v%d, s6, v%d'%(tmp+1,tmp+1),'v_and_b32 v%d, -9, v%d'%(tmp+2,tmp+1),'v_subrev_u32 v%d, %s, v%d'%(tmp+2,phase,tmp+2),'v_cmp_le_u32 vcc, 6, v%d'%(tmp+2)])
def tag_from(v):
    k('v_readlane_b32 s6, v%d, s4'%v); k('v_readlane_b32 s59, v%d, s4'%(v+1))
    k('s_cmp_eq_u32 s59, s7'); k('s_cselect_b32 s59, 0, 8'); k('s_cselect_b32 s12, 1, 0')
    k('s_cmp_eq_u32 s6, 0'); k('s_cselect_b32 s12, 0, s12')
    if not OPT['fast']: k('s_mov_b32 s12, 0'); k('s_mov_b32 s59, 8')
def lds_wait(off,tmp):
    l=k.lab('Llw'); d=k.lab('Lld')
    k('v_mov_b32 v%d, %d'%(tmp,LCNT+off)); k('s_mov_b32 s79, 0'); k(l+':')
    k('ds_read_b32 v%d, v%d'%(tmp+1,tmp)); k('s_waitcnt lgkmcnt(0)')
    k('v_cmp_eq_u32 vcc, 0, v%d'%(tmp+1)); k('s_cbranch_vccz %s'%d)
    k('s_add_u32 s79, s79, 1'); k('s_lshr_b32 s81, s79, 3'); k('s_cmp_lt_u32 s81, s80'); k('s_cbranch_scc1 %s'%l)
    k('s_mov_b32 s80, 0')
    k(d+':')
def lds_set(off,val,tmp):
    k('v_mov_b32 v%d, %d'%(tmp,LCNT+off)); k('v_mov_b32 v%d, %s'%(tmp+1,val)); k('ds_write_b32 v%d, v%d'%(tmp,tmp+1))
def mode_from(v):
    k('v_readfirstlane_b32 s12, v%d'%v); k('s_lshr_b32 s12, s12, 1')
def last_arriver(cnt_off, n, tmp, body):
    k('v_mov_b32 v%d, %d'%(tmp,LCNT+cnt_off)); k('v_mov_b32 v%d, 1'%(tmp+1))
    k('s_mov_b64 exec, 1')
    t=k('ds_add_rtn_u32 v%d, v%d, v%d'%(tmp+2,tmp,tmp+1))
    k('s_mov_b64 exec, -1')
    k.need(t)
    k('v_readfirstlane_b32 s78, v%d'%(tmp+2))
    l=k.lab('Lnl')
    k('s_add_u32 s78, s78, 1'); k('s_cmp_lg_u32 s78, %s'%n); k('s_cbranch_scc1 %s'%l)
    body()
    k(l+':')
def g0_chk(r,e): return ['v_xor_b32 v%d, v%d, v%d'%(r+i,r+i,e) for i in range(4)]+['v_or_b32 v%d, v%d, v%d'%(r,r,r+1),'v_or3_b32 v%d, v%d, v%d, v%d'%(r,r,r+2,r+3),'v_cmp_ne_u32 vcc, 0, v%d'%r]
def wdf_loads(voff):
    out=[]
    for i in range(60):
        pre=['s_add_u32 s75, s74, %d'%(i*1024)] if i%4==0 else []
        out.append(pre+['buffer_load_dwordx4 %s, v%d, %s, s75 offen offset:%d sc1'%(a4(4*i),voff,WS,(i%4)*1024)])
    return out
def wdf_rest(wl,depth):
    for i,grp in enumerate(wl):
        for x in grp: k(x)
        if i>=depth: k('s_waitcnt vmcnt(%d)'%depth)
def wdf_base():
    k('s_and_b32 s74, s5, 7'); k('s_mul_i32 s74, s74, 48'); k('s_mul_i32 s75, s3, 12'); k('s_add_u32 s74, s74, s75')
    k('s_mul_i32 s74, s74, 5120'); k('s_add_u32 s74, s74, 0x%x'%WDF)

k('s_cmp_ge_u32 s2, 256'); k('s_cbranch_scc1 L_end')
k('s_load_dwordx16 s[16:31], s[0:1], 0'); k('s_load_dwordx8 s[32:39], s[0:1], 64'); k('s_load_dwordx2 s[40:41], s[0:1], 96')
k('v_lshrrev_b32 v2, 6, v0'); k('v_and_b32 v1, 63, v0')
k('v_readfirstlane_b32 s3, v2')
k('s_and_b32 s4, s2, 7'); k('s_lshr_b32 s5, s2, 3')
k('s_getreg_b32 s7, hwreg(HW_REG_XCC_ID, 0, 4)')
k('s_mov_b32 s12, 0'); k('s_mov_b32 s13, 0'); k('s_mov_b32 s80, %d'%SPIN)
k('s_mov_b32 s14, 0x%x'%X1); k('s_mov_b32 s15, 0x%x'%H1); k('s_mov_b32 s42, 0x%x'%ST1)
k('s_waitcnt lgkmcnt(0)')
k.srd(8,40,WSB)
stamp('start')
if OPT['stamps']: k('s_memrealtime s[98:99]'); k('s_waitcnt lgkmcnt(0)'); k('v_writelane_b32 v0, s98, 62')
k('s_cmp_eq_u32 s3, 3'); k('s_cbranch_scc1 L_loader')

k.srd(44,18,TB); k.srd(48,20,TB); k.srd(56,22,640*8)
k('v_and_b32 v2, 3, v1'); k('v_lshrrev_b32 v3, 2, v1')
k('s_lshl_b32 s64, s3, 2'); k('v_add_u32 v4, s64, v2'); k('v_min_u32 v4, 9, v4')
k('s_mul_i32 s65, s4, 80'); k('v_lshl_add_u32 v4, v4, 3, s65')
k('s_mul_i32 s66, s5, %d'%(64*1280)); k('v_mul_u32_u24 v5, %d, v3'%(4*1280))
k('v_lshl_add_u32 v5, v4, 1, v5'); k('v_add_u32 v5, s66, v5')
k('v_subrev_u32 v6, 3840, v5'); k('v_lshlrev_b32 v7, 3, v4')
tk=[]
for r in range(4): tk.append(k('buffer_load_dwordx4 %s, v5, s[44:47], 0 offen offset:%d'%(v4(28+4*r),1280*r)))
tv=[k('buffer_load_dwordx4 %s, v5, s[48:51], 0 offen offset:%d'%(v4(44+4*r),1280*r)) for r in range(4)]
for r in range(3): tk.append(k('buffer_load_dwordx4 %s, v6, s[44:47], 0 offen offset:%d'%(v4(16+4*r),1280*r)))
tw=[k('buffer_load_dwordx4 %s, v7, s[56:59], 0 offen offset:%d'%(v4(76+4*r),16*r)) for r in range(4)]
k('s_barrier')
k.srd(52,16,TB); k.srd(60,24,TB)
k('s_mul_i32 s67, s5, 3'); k('s_add_u32 s67, s67, s3'); k('s_min_u32 s68, s67, 79'); k('s_add_u32 s68, s65, s68')
k('v_lshlrev_b32 v7, 4, v1')
k('s_mul_i32 s69, s3, 4224'); k('s_add_u32 s69, s69, %d'%LH)
k('s_add_u32 m0, s69, 32'); k('s_lshl_b32 s70, s68, 12')
for t in range(4): k('buffer_load_dwordx4 v7, s[60:63], s70 offen offset:%d lds'%(1024*t))
k('s_and_b32 s71, s68, -2'); k('s_lshl_b32 s71, s71, 1'); k('s_load_dword s72, s[26:27], s71')
k('v_mov_b32 v8, 0'); k('v_mov_b32 v9, 0'); k('v_lshlrev_b32 v10, 3, v1'); k('v_add_u32 v10, s69, v10')
k('s_mov_b64 exec, 15'); k('ds_write_b64 v10, v[8:9]'); k('s_mov_b64 exec, -1')
tq=[k('buffer_load_dwordx4 %s, v5, s[52:55], 0 offen offset:%d'%(v4(60+4*r),1280*r)) for r in range(4)]
k.srd(52,38,256)
k('s_mov_b32 s62, 0x05040100'); k('s_mov_b32 s63, 0x07060302'); k('s_mov_b32 s64, 0xffff0000')
k('s_lshl_b32 s66, s3, 13'); k('s_add_u32 s66, s66, %d'%LA)
k('v_lshrrev_b32 v8, 1, v3'); k('v_lshlrev_b32 v9, 1, v2'); k('v_xor_b32 v8, v8, v9'); k('v_lshlrev_b32 v8, 4, v8')
k('v_and_b32 v9, 1, v3'); k('v_lshl_add_u32 v8, v9, 3, v8'); k('v_lshl_add_u32 v8, v2, 10, v8'); k('v_add_u32 v8, s66, v8')
k('v_lshrrev_b32 v9, 3, v1'); k('v_and_b32 v10, 7, v1')
k('v_lshlrev_b32 v11, 7, v9'); k('v_add_u32 v11, s66, v11')
k('s_lshl_b32 s70, s3, 5'); k('s_add_u32 s70, s70, s65')
k('v_add_u32 v12, s70, v9'); k('v_lshlrev_b32 v12, 12, v12'); k('v_lshl_add_u32 v12, v10, 4, v12')
k('s_lshl_b32 s70, s5, 7'); k('v_add_u32 v12, s70, v12')
k('s_waitcnt lgkmcnt(0)')
k('s_bitcmp1_b32 s68, 0'); k('s_cselect_b32 s70, 0, 16'); k('s_lshl_b32 s72, s72, s70'); k('s_and_b32 s72, s72, 0xffff0000'); k('s_mov_b32 s73, s72')
k('v_and_b32 v13, 7, v1'); k('v_lshlrev_b32 v13, 3, v13')
k.need(tk,tw)
tm=k('buffer_load_dwordx2 v[14:15], v13, s[52:55], 0 offen sc1')
P=96; KS=112; VV=128; OUT=144
for dd in range(4):
    for par in range(2):
        sel='s62' if par==0 else 's63'
        for s in range(-2,4):
            k('v_perm_b32 v%d, v%d, v%d, %s'%(P+8*par+s+2, 16+4*(s-1+3)+dd, 16+4*(s+3)+dd, sel))
    for par in range(2):
        d=2*dd+par
        for s in range(4): k('v_dot2_f32_bf16 v%d, v%d, v%d, 0'%(KS+2*s+par, P+8*par+s, 76+2*d+1))
    for s in range(4):
        k('v_lshlrev_b32 v%d, 16, v%d'%(VV+2*s,44+4*s+dd)); k('v_and_b32 v%d, s64, v%d'%(VV+2*s+1,44+4*s+dd))
    for par in range(2):
        d=2*dd+par
        for s in range(4): k('v_dot2_f32_bf16 v%d, v%d, v%d, v%d'%(KS+2*s+par, P+8*par+s+2, 76+2*d, KS+2*s+par))
    o=OUT+4*(dd&1)
    k('s_nop 1')
    for s in range(4): k('v_pk_mul_f32 %s, %s, %s'%(v2(KS+2*s),v2(KS+2*s),v2(VV+2*s)))
    for par in range(2):
        for sp in range(2): k('v_cvt_pk_bf16_f32 v%d, v%d, v%d'%(o+2*par+sp, KS+4*sp+par, KS+4*sp+2+par))
    for par in range(2): k('ds_write_b64 v8, %s offset:%d'%(v2(o+2*par),(2*dd+par)*128))
rd=[]
for t in range(4):
    k('v_xor_b32 v13, %d, v10'%(2*t)); k('v_lshl_add_u32 v%d, v13, 4, v11'%(96+t))
    rd.append(k('ds_read_b128 %s, v%d offset:%d'%(v4(16+4*t),96+t,1024*t)))
k.need(tq)
for dd in range(4):
    o=OUT+4*(dd&1)
    for par in range(2):
        sel='s62' if par==0 else 's63'
        for sp in range(2): k('v_perm_b32 v%d, v%d, v%d, %s'%(o+2*par+sp, 60+4*(2*sp+1)+dd, 60+4*(2*sp)+dd, sel))
    for par in range(2): k('ds_write_b64 v8, %s offset:%d'%(v2(o+2*par),4096+(2*dd+par)*128))
for t in range(4): rq_=k('ds_read_b128 %s, v%d offset:%d'%(v4(32+4*t),96+t,4096+1024*t))
k('s_mov_b32 s76, %d'%KVT); k('s_mov_b32 s77, %d'%(KVT+32768)); k('s_mov_b32 s78, %d'%QT); k('s_mov_b32 s71, %d'%(QT+32768)); k('v_add_u32 v13, 0x10000, v12')
k.need(tm); tag_from(14)
k('s_cmp_eq_u32 s3, 2'); k('s_cbranch_scc1 L_a_w2')
k.need(rd[3])
hstore(['buffer_store_dwordx4 %s, v%d, %s, %s offen'%(v4(16+4*t),12+(t>>1),WS,('s76','s77')[t&1]) for t in range(4)])
k('s_waitcnt lgkmcnt(0)')
hstore(['buffer_store_dwordx4 %s, v%d, %s, %s offen'%(v4(32+4*t),12+(t>>1),WS,('s78','s71')[t&1]) for t in range(4)])
k('s_branch L_a_done')
k('L_a_w2:')
k('s_waitcnt lgkmcnt(0)')
hstore(['buffer_store_dwordx4 %s, v12, %s, %s offen'%(v4(r),WS,sg) for r,sg in ((16,'s76'),(20,'s77'),(32,'s78'),(36,'s71'))])
k('L_a_done:')
k('v_mov_b32 v8, 0'); k('v_lshlrev_b32 v10, 2, v1'); k('v_add_u32 v10, s66, v10'); k('ds_write_b32 v10, v8')
UB=16; HB=144; AC=[208,216]; YR=224; KVr=232; Qr=236; Rr=240; NMr=248
k('v_and_b32 v10, 3, v1'); k('v_bfe_u32 v11, v1, 2, 2'); k('v_lshrrev_b32 v12, 4, v1'); k('v_and_b32 v13, 15, v1')
k('v_add_u32 v2, v10, v12'); k('v_lshlrev_b32 v2, 6, v2'); k('v_lshl_add_u32 v2, v11, 3, v2'); k('s_add_u32 s71, s66, 32'); k('v_add_u32 v2, s71, v2')
k('v_sub_u32 v3, v10, v11'); k('v_lshlrev_b32 v3, 3, v3'); k('v_lshlrev_b32 v14, 6, v12'); k('v_sub_u32 v3, v3, v14')
k('s_add_u32 s71, s69, 224'); k('v_add_u32 v3, s71, v3')
k('v_mov_b32 v14, s69'); k('v_mov_b32 v15, s66')
k('v_cmp_le_u32 vcc, 2, v12'); k('v_and_b32 v5, 1, v12'); k('v_add_u32 v6, 1, v12'); k('v_cndmask_b32 v4, v14, v15, vcc')
k('v_lshl_add_u32 v4, v5, 7, v4'); k('v_lshl_add_u32 v4, v13, 2, v4')
k('v_and_b32 v8, 2, v6'); k('v_cmp_ne_u32 vcc, 0, v8'); k('v_and_b32 v8, 1, v6'); k('v_lshrrev_b32 v9, 2, v6'); k('v_cndmask_b32 v5, v14, v15, vcc')
k('v_lshl_add_u32 v5, v8, 7, v5'); k('v_lshl_add_u32 v5, v9, 8, v5'); k('v_lshl_add_u32 v5, v13, 2, v5')
k('v_and_b32 v8, 8, v1'); k('v_cmp_ne_u32 vcc, 0, v8'); k('v_and_b32 v8, 7, v1'); k('v_lshrrev_b32 v9, 3, v1'); k('v_cndmask_b32 v6, v14, v15, vcc')
k('v_lshl_add_u32 v6, v12, 8, v6'); k('v_lshl_add_u32 v6, v8, 5, v6')
k('s_mov_b32 s71, 81920'); k('v_mul_lo_u32 v9, v9, s71'); k('v_lshl_add_u32 v9, v8, 4, v9')
k('s_lshl_b32 s71, s68, 7'); k('v_add_u32 v9, s71, v9')
k('v_lshlrev_b32 v8, 5, v1')
k('s_lshl_b32 s65, s68, 12')
wdf_base()
stamp('Acomp')
k('s_waitcnt vmcnt(0)')
stamp('Adrain')
def rdH(m): return ['ds_read_b64_tr_b16 %s, v3 offset:%d'%(v2(HB+4*m+2*hh),256*m+32*(1-hh)) for hh in range(2)]
def rdU(n,o): return ['ds_read_b64_tr_b16 %s, v2 offset:%d'%(v2(UB+8*n+4*o+2*hh),256*n+32*o+32*hh) for hh in range(2)]
def s1_body():
    k('s_cmp_lg_u32 s6, 0'); k('s_cbranch_scc1 L_tagok')
    k('v_and_b32 v13, 7, v1'); k('v_lshlrev_b32 v13, 3, v13')
    poll(['buffer_load_dwordx2 v[14:15], v13, s[52:55], 0 offen sc1'],['v_cmp_eq_u32 vcc, 0, v14'])
    tag_from(14)
    k('L_tagok:')
    island_flag_store('1',12)
    k('s_cmp_eq_u32 s12, 0'); k('s_cbranch_scc1 L_s1slow')
    island_poll('1',12)
    k('v_and_b32 v13, 8, v13'); k('v_cmp_ne_u32 vcc, 0, v13'); k('s_cbranch_vccz L_s1ok')
    k('buffer_wbl2 sc1'); k('s_waitcnt vmcnt(0)'); k('s_mov_b32 s12, 0')
    k('L_s1slow:')
    island_flag_store('1',12,line=384,sc1=True); island_poll('1',12,line=384)
    k('L_s1ok:')
    k('v_mov_b32 v12, %d'%(LCNT+C_MODE)); k('s_add_u32 s76, s12, 1'); k('v_mov_b32 v14, s76'); k('v_mov_b32 v15, s6'); k('ds_write_b64 v12, v[14:15]')
last_arriver(C_A,'3',10,s1_body)
def mode_wait(tmp):
    lds_wait(C_MODE,tmp); mode_from(tmp+1)
    k('ds_read_b32 v%d, v%d offset:4'%(tmp+1,tmp)); k('s_waitcnt lgkmcnt(0)'); k('v_readfirstlane_b32 s6, v%d'%(tmp+1))
    k('s_lshl_b32 s59, s12, 3'); k('s_xor_b32 s59, s59, 8')
mode_wait(10)
stamp('S1')
k('s_cmp_lt_u32 s67, 80'); k('s_cbranch_scc1 L_conv')
lds_wait(C_G0,10)
for grp in wdf_loads(7): K_(grp)
k('s_cmp_lg_u32 s5, 31'); k('s_cbranch_scc1 L_pre'); k('s_cmp_lg_u32 s3, 0'); k('s_cbranch_scc1 L_pre')
island_poll('2',10,27)
k('s_add_u32 s78, s6, 1'); k('v_mov_b32 v10, s78'); k('v_lshlrev_b32 v11, 9, v1')
k('s_lshl_b32 s77, s4, 2'); k('s_add_u32 s77, s77, 0x%x'%(FLG+256))
k('s_mov_b64 exec, 0xff'); k('buffer_store_dword v10, v11, %s, s77 offen sc1'%WS); k('s_mov_b64 exec, -1')
k('s_branch L_pre')

k('L_conv:')
k.reset_counts()
k('s_add_u32 m0, s66, 256'); k('s_add_u32 s70, s65, %d'%KVT)
tU=[k('buffer_load_dwordx4 v7, %s, s70 offen offset:%d sc1 lds'%(WS,1024*t)) for t in range(4)]
tok={}
PRE=4
for m in range(PRE):
    for x in rdH(m): tok['H',m]=k(x)
k.need(tU[0])
for n in range(PRE-1):
    for o in range(2):
        for x in rdU(n,o): tok['U',n]=k(x)
k.need(tU[3])
for o in range(2):
    for x in rdU(PRE-1,o): tok['U',PRE-1]=k(x)
DP='row_mask:0xf bank_mask:0xf bound_ctrl:0'
def post(b):
    E=AC[b&1]; O=E+4; cn=12+(b&1); cp=12+((b+1)&1)
    g=['v_add_f32_dpp v10, v%d, v%d row_shr:1 %s'%(E+1,E,DP),
       'v_add_f32_dpp v11, v%d, v%d row_shr:1 %s'%(O+1,O,DP),
       'v_mov_b32_dpp v%d, v%d row_shl:15 %s'%(cn,O+1,DP),
       'v_add_f32_dpp v10, v%d, v10 row_shr:2 %s'%(E+2,DP),
       'v_add_f32_dpp v11, v%d, v11 row_shr:2 %s'%(O+2,DP),
       'v_add_f32_dpp v%d, v%d, v%d row_shl:14 %s'%(cn,O+2,cn,DP),
       'v_add_f32_dpp v10, v%d, v10 row_shr:3 %s'%(E+3,DP),
       'v_add_f32_dpp v11, v%d, v11 row_shr:3 %s'%(O+3,DP),
       'v_add_f32_dpp v%d, v%d, v%d row_shl:13 %s'%(cn,O+3,cn,DP),
       'ds_write_b32 v4, v10 offset:%d'%(256*b),
       'v_add_f32_dpp v11, v%d, v11 row_shl:15 %s'%(E+1,DP)]
    if b>0: g.append('ds_add_f32 v5, v%d offset:%d'%(cp,256*(b-1)))
    g+=['v_add_f32_dpp v11, v%d, v11 row_shl:14 %s'%(E+2,DP),
        'v_add_f32_dpp v11, v%d, v11 row_shl:13 %s'%(E+3,DP),
        'ds_write_b32 v4, v11 offset:%d'%(256*b+64)]
    if b==15: g.append('ds_add_f32 v5, v%d offset:%d'%(cn,256*b))
    return g
def tk_(key,x):
    def f(): tok[key]=k(x)
    return f
def chunk_loads(c):
    return [S('s_add_u32 s70, s65, %d'%(KVT+1024*c)),S('buffer_load_dwordx4 %s, v7, %s, s70 offen sc1'%(v4(KVr),WS)),
            S('s_add_u32 s70, s65, %d'%(QT+1024*c)),S('buffer_load_dwordx4 %s, v7, %s, s70 offen sc1'%(v4(Qr),WS)),
            S('s_mov_b32 s70, %d'%(QR+2048*c)),S('buffer_load_dwordx4 %s, v8, %s, s70 offen sc1'%(v4(Rr),WS)),
            S('buffer_load_dwordx4 %s, v8, %s, s70 offen offset:16 sc1'%(v4(Rr+4),WS)),
            S('s_mov_b32 s70, %d'%(QNM+2048*c)),S('buffer_load_dwordx4 %s, v8, %s, s70 offen sc1'%(v4(NMr),WS)),
            tk_(('cl',c),'buffer_load_dwordx4 %s, v8, %s, s70 offen offset:16 sc1'%(v4(NMr+4),WS))]
def chunk_store(c,xq,xy):
    return ['s_mov_b32 s70, %d'%(X1+8*81920*c),'buffer_store_dwordx4 %s, v9, %s, s70 offen sc1'%(v4(xq),WS),
            's_mov_b32 s70, %d'%(YB+8*81920*c),'buffer_store_dwordx4 %s, v9, %s, s70 offen sc1'%(v4(xy),WS)]
def chunk_compute(c):
    f=[S('ds_read_b128 %s, v6 offset:%d'%(v4(YR),1024*c)),tk_(('cy',c),'ds_read_b128 %s, v6 offset:%d'%(v4(YR+4),1024*c+16))]
    for i in range(4):
        def a0(i=i):
            if i==0: k.need(tok['cl',c])
            k('v_lshlrev_b32 v14, 16, v%d'%(KVr+i))
        def a1(i=i):
            if i==0: k.need(tok['cy',c])
            k('v_pk_fma_f32 %s, v[14:15], s[72:73], %s op_sel_hi:[1,0,1]'%(v2(YR+2*i),v2(YR+2*i)))
        f+=[a0,S('v_and_b32 v15, s64, v%d'%(KVr+i)),a1,S('v_lshlrev_b32 v14, 16, v%d'%(Qr+i)),S('v_and_b32 v15, s64, v%d'%(Qr+i)),
            S('v_pk_fma_f32 %s, v[14:15], %s, %s'%(v2(Rr+2*i),v2(Rr+2*i),v2(NMr+2*i))),
            S('v_cvt_pk_bf16_f32 v%d, v%d, v%d'%(KVr+i,YR+2*i,YR+2*i+1)),
            S('v_pk_fma_f32 %s, %s, %s, v[14:15]'%(v2(Rr+2*i),v2(Rr+2*i),v2(YR+2*i))),
            S('v_cvt_pk_bf16_f32 v%d, v%d, v%d'%(Qr+i,Rr+2*i,Rr+2*i+1))]
    if c<3 and OPT.get('defer',1):
        f+=[S('ds_write_b128 v6, %s offset:%d'%(v4(Qr),1024*c)),S('ds_write_b128 v6, %s offset:%d'%(v4(KVr),1024*c+16))]
    else: f+=[S(x) for x in chunk_store(c,Qr,KVr)]
    return f
wl=wdf_loads(7)
wl_per_step={b:OPT.get('wl%d'%b,d) for b,d in ((10,0),(11,0),(12,0),(13,6),(14,6))}
CL={7:0,10:1,12:2,14:3}; CC={9:0,11:1,13:2}
for b in range(16):
    postg=[S(x) for x in post(b-1)] if b>0 else []
    rds=[]
    if b+PRE<16:
        rds=[tk_(('H',b+PRE),x) for x in rdH(b+PRE)]+[tk_(('U',b+PRE),x) for o in range(2) for x in rdU(b+PRE,o)]
    fill=rds+postg
    if b in CC: fill+=chunk_compute(CC[b])
    if b in CL:
        if CL[b]==0: fill.append(lambda: lds_wait(C_G0,YR))
        fill+=chunk_loads(CL[b])
    for _ in range(wl_per_step.get(b,0)): fill+=[S(x) for x in wl.pop(0)]
    order=list(range(1,b))+([0,b] if b>0 else [0])
    mf=[]
    for idx,n in enumerate(order):
        for o in range(2):
            acc=AC[b&1]+4*o
            mf.append((n,b-n,'v_mfma_f32_16x16x32_bf16 %s, %s, %s, %s'%(v4(acc),v4(UB+8*n+4*o),v4(HB+4*(b-n)),'0' if idx==0 else v4(acc))))
    nf=len(fill); nm=len(mf)
    if b in(0,5,9,13): stamp('cv%d'%b)
    lead=0 if rds else min(4,nm-1)
    for i,(n,m,x) in enumerate(mf):
        k.need(tok['U',n],tok['H',m])
        k(x)
        if i>=lead:
            for f in fill[((i-lead)*nf)//(nm-lead):((i-lead+1)*nf)//(nm-lead)]: f()
if OPT.get('defer',1):
    tb=[(k('ds_read_b128 %s, v6 offset:%d'%(v4(UB+8*c),1024*c)),k('ds_read_b128 %s, v6 offset:%d'%(v4(UB+8*c+4),1024*c+16))) for c in range(3)]
for x in post(15): k(x)
if OPT.get('defer',1):
    for c in range(3):
        k.need(tb[c][1]); K_(chunk_store(c,UB+8*c,UB+8*c+4))
for f in chunk_compute(3): f()
stamp('conv')
k('s_waitcnt vmcnt(0)')
stamp('convdr')
k('s_cmp_eq_u32 s5, 26'); k('s_cselect_b32 s70, 2, 3')
last_arriver(C_CV,'s70',10,lambda: island_flag_store('2',14))
wdf_rest(wl,OPT.get('wdep',5))
k('s_branch L_pre')

k('L_loader:')
k.reset_counts()
for i in range(4): k('v_mov_b32 v%d, 0'%(8+i))
k.srd(60,38,256)
k('s_cmp_lg_u32 s5, 0'); k('s_cbranch_scc1 L_notag')
k('s_memrealtime s[64:65]'); k('s_waitcnt lgkmcnt(0)'); k('s_lshl_b32 s64, s64, 4'); k('s_or_b32 s64, s64, 0x80000000')
k('v_mov_b32 v12, s64'); k('v_mov_b32 v13, s7'); k('s_lshl_b32 s65, s4, 3')
k('s_mov_b64 exec, 1'); k('buffer_store_dwordx2 v[12:13], v8, s[60:63], s65 offen sc1'); k('s_mov_b64 exec, -1')
k('L_notag:')
k.reset_counts()
k('v_mov_b32 v13, %d'%LCNT); k('ds_write_b128 v13, v[8:11]'); k('ds_write_b128 v13, v[8:11] offset:16')
k.srd(44,16,TB)
k('v_lshrrev_b32 v2, 3, v1'); k('v_and_b32 v3, 7, v1'); k('s_lshl_b32 s64, s2, 3'); k('v_add_u32 v4, s64, v2')
k('v_mul_u32_u24 v5, 1280, v4'); k('v_lshl_add_u32 v5, v3, 4, v5')
k('s_waitcnt lgkmcnt(0)'); k('s_barrier')
tq=[k('buffer_load_dwordx4 %s, v5, s[44:47], 0 offen offset:%d'%(v4(16+4*t),128*t)) for t in range(10)]
k.srd(48,34,1536*1280); k.srd(52,30,640*3072); k.srd(56,32,640*3072)
LST=LWU+51200
k('s_cmp_ge_u32 s2, 192'); k('s_cbranch_scc1 L_nowd1')
for t in range(5):
    k('v_add_u32 v6, %d, v1'%(64*t)); k('v_mul_u32_u24 v7, 6554, v6'); k('v_lshrrev_b32 v7, 16, v7')
    k('v_mul_u32_u24 v12, 10, v7'); k('v_sub_u32 v6, v6, v12'); k('v_mul_u32_u24 v7, 1280, v7'); k('v_lshl_add_u32 v%d, v6, 4, v7'%(60+t))
sv=k.nv
for e in range(2):
    k('s_lshl_b32 s65, s2, 1'); k('s_add_u32 s65, s65, %d'%e); k('s_and_b32 s66, s65, 7'); k('s_lshr_b32 s67, s65, 3')
    k('s_mul_i32 s68, s67, %d'%(32*1280)); k('s_mul_i32 s69, s66, 160'); k('s_add_u32 s68, s68, s69')
    k('s_mul_i32 s69, s66, 48'); k('s_add_u32 s69, s69, s67'); k('s_mul_i32 s69, s69, 5120'); k('s_add_u32 s%d, s69, 0x%x'%(70+e,WDF))
    for t in range(5):
        k('s_mov_b32 m0, %d'%(LST+5120*e+1024*t)); k('buffer_load_dwordx4 v%d, s[48:51], s68 offen lds'%(60+t))
k.nv=sv
k('L_nowd1:')
for i in range(4): k('v_mov_b32 v%d, -1'%(12+i))
k('v_lshlrev_b32 v7, 4, v1'); k('s_lshl_b32 s65, s2, 10'); k('s_add_u32 s65, s65, 0x%x'%ST1)
k('buffer_store_dwordx4 v[12:15], v7, %s, s65 offen sc1'%WS)
for t in range(3):
    k('v_add_u32 v6, %d, v1'%(64*t)); k('v_mul_u32_u24 v8, 10923, v6'); k('v_lshrrev_b32 v8, 16, v8')
    k('v_mul_u32_u24 v9, 6, v8'); k('v_sub_u32 v6, v6, v9'); k('v_mul_u32_u24 v8, 3072, v8'); k('v_lshl_add_u32 v%d, v6, 4, v8'%(66+t))
k('s_mul_i32 s72, s5, 96'); k('s_mov_b32 s73, 0')
def w1_issue():
    for gu in range(2):
        for t in range(3):
            k('s_add_u32 m0, s73, %d'%(LWU*gu+1024*t)); k('buffer_load_dwordx4 v%d, s[%d:%d], s72 offen lds'%(66+t,52+4*gu,55+4*gu))
    k('s_add_u32 s72, s72, %d'%(32*3072)); k('s_add_u32 s73, s73, 3072')
k('s_mov_b32 s64, 0xffff0000')
for i in range(4): k('v_mov_b32 v%d, 0'%(56+i))
k('v_lshrrev_b32 v69, 3, v1'); k('v_lshlrev_b32 v69, 3, v69')
k('s_waitcnt vmcnt(1)')
stamp('cv0')
tdbg=k('buffer_load_dword v70, v69, s[60:63], 0 offen sc1')
w1_issue(); w1_issue()
k('v_bfe_u32 v72, v1, 2, 2'); k('v_lshrrev_b32 v73, 4, v1'); k('v_lshl_add_u32 v72, v73, 2, v72'); k('v_and_b32 v73, 3, v1')
k('s_cmp_ge_u32 s2, 192'); k('s_cbranch_scc1 L_nowd2')
k('v_mul_u32_u24 v6, 160, v72'); k('v_lshl_add_u32 v6, v73, 3, v6'); k('v_add_u32 v6, %d, v6'%LST)
rd={}; sv=k.nv
for e in range(2):
    for nb in range(5):
        for hh in range(2): rd[e,nb]=k('ds_read_b64_tr_b16 %s, v6 offset:%d'%(v2(104+20*e+4*nb+2*hh),5120*e+2560*hh+32*nb))
for e in range(2):
    for nb in range(5):
        k.need(rd[e,nb])
        if nb==4: k('s_add_u32 s%d, s%d, 4096'%(70+e,70+e))
        k('buffer_store_dwordx4 %s, v7, %s, s%d offen offset:%d sc1'%(v4(104+20*e+4*nb),WS,70+e,1024*(nb%4)))
k.nv=sv
k('L_nowd2:')
for t in range(10):
    for j in range(4):
        r=16+4*t+j; T=10 if j&1 else 8
        k('v_lshlrev_b32 v%d, 16, v%d'%(T,r)); k('v_and_b32 v%d, s64, v%d'%(T+1,r))
        k('v_pk_add_f32 v[56:57], v[56:57], %s'%v2(T)); k('v_pk_fma_f32 v[58:59], %s, %s, v[58:59]'%(v2(T),v2(T)))
k('v_add_f32 v56, v56, v57'); k('v_add_f32 v58, v58, v59')
for m in ('quad_perm:[1,0,3,2]','quad_perm:[2,3,0,1]','row_half_mirror'):
    k('v_add_f32_dpp v56, v56, v56 %s row_mask:0xf bank_mask:0xf'%m); k('v_add_f32_dpp v58, v58, v58 %s row_mask:0xf bank_mask:0xf'%m)
k('v_mul_f32 v56, 0x%x, v56'%INV); k('v_mul_f32 v58, 0x%x, v58'%INV)
k('v_fma_f32 v58, -v56, v56, v58'); k('v_max_f32 v58, 0, v58'); k('v_add_f32 v58, 0x%x, v58'%EPS); k('v_rsq_f32 v58, v58')
k('v_lshlrev_b32 v6, 2, v2'); k('v_add_u32 v6, %d, v6'%(LCNT+64))
k('v_mul_f32_e64 v56, -v56, v58')
k('ds_write_b32 v6, v58'); k('ds_write_b32 v6, v56 offset:32')
k('v_and_b32 v6, 3, v1'); k('v_lshlrev_b32 v8, 4, v6'); k('v_add_u32 v8, %d, v8'%(LCNT+64))
t=k('ds_read_b128 v[56:59], v8')
k('v_and_b32 v8, 1, v1'); k('v_lshlrev_b32 v8, 4, v8'); k('v_lshrrev_b32 v6, 1, v6'); k('v_lshl_add_u32 v8, v6, 13, v8')
k('s_lshl_b32 s65, s2, 5'); k('s_add_u32 s65, s65, 0x%x'%QR)
k.need(t)
k('s_mov_b64 exec, 15'); k('buffer_store_dwordx4 v[56:59], v8, %s, s65 offen sc1'%WS); k('s_mov_b64 exec, -1')
w1_issue()
stamp('Acomp')
k('v_mul_u32_u24 v4, 96, v72'); k('v_lshl_add_u32 v4, v73, 3, v4'); k('v_add_u32 v5, %d, v4'%LWU)
k('s_mov_b32 s66, 0x3f803f80')
for i in range(4): k('v_mov_b32 v%d, s66'%(12+i))
for i in range(24): k('v_mov_b32 v%d, 0'%(80+i))
k('v_lshrrev_b32 v6, 3, v1'); k('v_and_b32 v8, 7, v1'); k('v_lshlrev_b32 v8, 4, v8'); k('v_lshl_add_u32 v6, v6, 9, v8'); k('s_mov_b32 s68, 0x%x'%(FLG+128))
for i in range(4): k('v_mov_b32 v%d, 0'%(40+i))
k('s_mov_b32 s69, 0'); k('s_mov_b32 s67, 0')
k('s_waitcnt vmcnt(6)')
k('v_cmp_eq_u32 vcc, 0, v70'); k('s_cbranch_vccz L_dbgok')
poll(['buffer_load_dword v70, v69, s[60:63], 0 offen sc1'],['v_cmp_eq_u32 vcc, 0, v70'])
k('L_dbgok:')
k('s_lshl_b32 s76, s4, 3'); k('v_readlane_b32 s6, v70, s76')
k('v_add_u32 v70, 1, v70'); k('s_add_u32 s78, s6, 1'); k('v_mov_b32 v8, s78'); k('v_mov_b32 v9, 0')
flag_addr(128)
k('s_mov_b64 exec, 1'); k('buffer_store_dword v8, v9, %s, s77 offen sc1'%WS); k('s_mov_b64 exec, -1')
stamp('Adrain')
W1D=OPT.get('w1d',2)
for i in range(W1D-1): w1_issue()
k('L_w1:')
k('s_cmp_ge_u32 s67, %d'%(18-W1D)); k('s_cbranch_scc1 L_w1n')
k('s_waitcnt vmcnt(%d)'%(6*(W1D-1)))
k('s_cmp_lg_u32 s69, 0'); k('s_cbranch_scc1 L_w1i')
k('s_cmp_lt_u32 s67, %d'%OPT.get('g0s',4)); k('s_cbranch_scc1 L_w1i')
K_(g0_chk(40,70))
k('s_cbranch_vccnz L_w1g')
k('s_mov_b32 s69, 1'); lds_set(C_G0,'1',44)
stamp('cv9')
k('s_branch L_w1i')
k('L_w1g:'); k('buffer_load_dwordx4 v[40:43], v6, %s, s68 offen sc1'%WS)
k('L_w1i:')
w1_issue()
k('s_branch L_w1m')
k('L_w1n:'); k('s_waitcnt vmcnt(0)')
k('L_w1m:')
for p in range(3):
    for gu in range(2):
        for hh in range(2): k('ds_read_b64_tr_b16 %s, v%d offset:%d'%(v2(16+4*(2*p+gu)+2*hh),4+gu,1536*hh+32*p))
k('v_add_u32 v4, 3072, v4'); k('v_add_u32 v5, 3072, v5')
k('s_waitcnt lgkmcnt(0)')
for b in range(6): k('v_mfma_f32_16x16x32_bf16 %s, %s, v[12:15], %s'%(v4(80+4*b),v4(16+4*b),v4(80+4*b)))
k('s_add_u32 s67, s67, 1'); k('s_cmp_lt_u32 s67, 20'); k('s_cbranch_scc1 L_w1')
stamp('conv')
k('s_cmp_lg_u32 s69, 0'); k('s_cbranch_scc1 L_g0d')
poll(['buffer_load_dwordx4 v[40:43], v6, %s, s68 offen sc1'%WS],g0_chk(40,70))
lds_set(C_G0,'1',44)
k('L_g0d:')
k('v_lshrrev_b32 v6, 4, v1'); k('v_lshlrev_b32 v6, 4, v6'); k('s_lshl_b32 s65, s2, 9'); k('s_add_u32 s65, s65, 0x%x'%CS)
k('s_mov_b32 s66, 0x00010001'); k('s_nop 7'); k('s_mov_b32 exec_lo, s66'); k('s_mov_b32 exec_hi, s66')
for b in range(6): k('buffer_store_dwordx4 %s, v6, %s, s65 offen offset:%d'%(v4(80+4*b),WS,64*b))
k('s_mov_b64 exec, -1')
mode_wait(8)
k('v_and_b32 v30, 7, v1'); k('v_lshlrev_b32 v30, 5, v30'); k('ds_bpermute_b32 v31, v30, v70'); k('s_waitcnt lgkmcnt(0)')
if OPT.get('pt',1):
    k('s_cmp_lg_u32 s12, 1'); k('s_cbranch_scc1 L_nopt')
    K_(['v_lshrrev_b32 v27, 4, v1','s_mov_b32 s76, 49152','v_mul_lo_u32 v27, v27, s76','v_and_b32 v28, 7, v1','v_lshl_add_u32 v27, v28, 7, v27',
       'v_bfe_u32 v28, v1, 3, 1','s_and_b32 s76, s5, 1','s_lshl_b32 s76, s76, 1','s_sub_u32 s76, s76, 1','v_mul_lo_u32 v28, v28, s76','v_lshl_add_u32 v27, v28, 10, v27',
       's_lshr_b32 s76, s5, 1','s_mul_i32 s76, s76, 3072','s_mul_i32 s77, s4, %d'%(16*49152),'s_add_u32 s76, s76, s77','v_add_u32 v27, 1024, v27'])
    for H in (H1,H2):
        for w in range(4):
            k('s_add_u32 s77, s76, %d'%(H+4*49152*w)); k('buffer_load_dword v28, v27, %s, s77 offen sc1'%WS)
    k('s_lshl_b32 s76, s4, 2'); k('s_lshr_b32 s77, s5, 3'); k('s_add_u32 s76, s76, s77'); k('s_mul_i32 s76, s76, 81920')
    k('s_and_b32 s77, s5, 7'); k('s_mul_i32 s77, s77, 10240'); k('s_add_u32 s76, s76, s77'); k('s_add_u32 s76, s76, %d'%X3)
    k('v_lshlrev_b32 v27, 7, v1'); k('buffer_load_dword v28, v27, %s, s76 offen sc1'%WS)
    k('v_and_b32 v27, 15, v1'); k('v_lshlrev_b32 v27, 7, v27'); k('s_add_u32 s76, s76, 8192'); k('buffer_load_dword v28, v27, %s, s76 offen sc1'%WS)
    k('L_nopt:')
wdf_base()
wdf_rest(wdf_loads(7),OPT.get('wdepl',10))
stamp('convdr')

k('L_pre:')
k.reset_counts()
ACC=32; XS=[128,144]; WF=160; SA=184; ONE=188; STL=192; CSR=224
k('s_lshl_b32 s64, s3, 13'); k('s_add_u32 s64, s64, %d'%LR)
k('v_lshrrev_b32 v12, 3, v1'); k('v_bfe_u32 v13, v12, 1, 2'); k('v_lshlrev_b32 v13, 1, v13'); k('v_and_b32 v14, 7, v1'); k('v_xor_b32 v13, v14, v13')
k('v_lshlrev_b32 v13, 4, v13'); k('v_lshl_add_u32 v2, v12, 7, v13')
k('v_xor_b32 v13, v14, v12'); k('v_lshlrev_b32 v13, 4, v13'); k('v_lshl_add_u32 v3, v12, 7, v13')
k('s_lshl_b32 s65, s4, 2'); k('s_add_u32 s65, s65, s3'); k('s_mul_i32 s65, s65, 81920'); k('s_add_u32 s65, s65, s14')
k('s_lshr_b32 s66, s5, 3')
for i in range(4):
    k('s_add_u32 s72, s66, %d'%i); k('s_and_b32 s72, s72, 3'); k('s_mul_i32 s72, s72, 20480'); k('s_add_u32 s%d, s72, s65'%(67+i))
k('v_bfe_u32 v10, v1, 2, 2'); k('v_lshrrev_b32 v11, 4, v1'); k('v_lshl_add_u32 v10, v11, 2, v10'); k('v_and_b32 v11, 3, v1')
k('v_mul_u32_u24 v8, 96, v10'); k('v_lshl_add_u32 v8, v11, 3, v8')
k('s_and_b32 s72, s5, 1'); k('s_lshl_b32 s73, s72, 5'); k('s_xor_b32 s72, s72, 1'); k('s_lshl_b32 s72, s72, 6')
k('v_add_u32 v9, s72, v8'); k('v_add_u32 v8, s73, v8')
def wbases(it):
    r=16+4*(it&1)
    return ['s_add_u32 s72, s66, %d'%it,'s_and_b32 s72, s72, 3','s_mul_i32 s72, s72, 15360','v_add_u32 v%d, s72, v8'%r,'v_add_u32 v%d, s72, v9'%(r+1),
            's_add_u32 s72, s72, %d'%LWU,'v_add_u32 v%d, s72, v8'%(r+2),'v_add_u32 v%d, s72, v9'%(r+3)]
K_(wbases(0))
k('v_bfe_u32 v12, v10, 1, 2'); k('s_and_b32 s72, s5, 3'); k('v_xor_b32 v12, s72, v12'); k('v_lshlrev_b32 v12, 1, v12')
k('v_lshrrev_b32 v13, 1, v11'); k('v_and_b32 v14, 1, v11'); k('v_lshlrev_b32 v14, 3, v14'); k('v_lshl_add_u32 v14, v10, 7, v14'); k('v_add_u32 v14, s64, v14')
for q in range(4):
    k('v_add_u32 v15, %d, v13'%(2*q)); k('v_xor_b32 v15, v15, v12'); k('v_lshl_add_u32 v%d, v15, 4, v14'%(4+q))
k('s_mov_b32 s72, 0x3f803f80')
for i in range(4): k('v_mov_b32 v%d, s72'%(ONE+i))
def dma_pre(ks): return ['s_add_u32 m0, s64, %d'%((ks&1)*4096),'s_add_u32 s71, s%d, %d'%(67+ks//5,(ks%5)*4096)]
def dma(t): return 'buffer_load_dwordx4 v2, %s, s71 offen offset:%d%s lds'%(WS,1024*t,LP)
K_(dma_pre(0))
k('s_cmp_eq_u32 s13, 1'); k('s_cbranch_scc1 L_s6')
k('s_cmp_lg_u32 s3, 3'); k('s_cbranch_scc1 L_s2b')
k('v_and_b32 v28, 7, v1'); k('v_lshlrev_b32 v28, 2, v28'); k('s_lshl_b32 s77, s4, 9'); k('s_add_u32 s77, s77, 0x%x'%(FLG+256))
poll(['buffer_load_dword v29, v28, %s, s77 offen sc1'%WS], ['v_cmp_ne_u32 vcc, v31, v29'])
k('s_branch L_s2b')
k('L_s6:')
k('s_waitcnt vmcnt(0) lgkmcnt(0)'); k('s_barrier')
k('s_cmp_lg_u32 s3, 0'); k('s_cbranch_scc1 L_s2b')
island_flag_store('4',28); island_poll('4',28)
k('L_s2b:')
k('s_waitcnt vmcnt(0) lgkmcnt(0)')
k('s_barrier')
stamp('G1in',True)
if OPT['stop']<=1: k('s_branch L_fin')

T={}
for t in range(4): T['d',0]=k(dma(t))
K_(dma_pre(1))
for t in range(4): T['d',1]=k(dma(t))
def wr(ks,b):
    p=b>>1; gu=b&1
    base=16+4*((ks//5)&1)+2*gu+(1 if p==2 else 0); off=(ks%5)*3072+(32*p if p<2 else 0)
    return ['ds_read_b64_tr_b16 %s, v%d offset:%d'%(v2(WF+4*b+2*hh),base,off+1536*hh) for hh in range(2)]
for b in range(5):
    for x in wr(0,b): T['w',0,b]=k(x)
K_(dma_pre(2))
def xr(ks,q): return ['ds_read_b64_tr_b16 %s, v%d offset:%d'%(v2(XS[ks&1]+4*q+2*hh),4+q,(ks&1)*4096+2048*hh) for hh in range(2)]
k.need(T['d',0])
for q in range(4):
    for x in xr(0,q): T['x',0]=k(x)
stamp('G1pro',True)
def st_loads():
    o=[]
    for q in range(4):
        o+=['s_xor_b32 s76, s75, %d'%q,'s_lshl_b32 s76, s76, 9','s_add_u32 s76, s76, s74',
            'buffer_load_dwordx4 %s, v24, %s, s76 offen sc1'%(v4(STL+8*q),WS),'buffer_load_dwordx4 %s, v24, %s, s76 offen offset:16 sc1'%(v4(STL+8*q+4),WS)]
    return o
def publish_stats():
    o=[]
    for msk,r in (('0x22222222',1),('0x44444444',2),('0x88888888',3)):
        o+=['s_mov_b32 s72, %s'%msk,'s_mov_b32 s73, s72','v_cndmask_b32 v25, v%d, v%d, s[72:73]'%(SA if r==1 else 25,SA+r)]
    o+=['s_lshl_b32 s74, s4, 4','s_lshl_b32 s75, s3, 2','s_add_u32 s74, s74, s75','s_lshl_b32 s74, s74, 9','s_add_u32 s74, s74, s42',
        's_and_b32 s75, s5, 3','s_lshl_b32 s76, s75, 9','s_add_u32 s76, s76, s74','s_bfe_u32 s77, s5, 0x10002','s_lshl_b32 s77, s77, 4','s_add_u32 s76, s76, s77',
        's_lshl_b32 s77, s66, 2','s_add_u32 s76, s76, s77','v_and_b32 v24, 15, v1','v_lshlrev_b32 v24, 5, v24']
    o=[S(x) for x in o]
    def st():
        k('s_mov_b32 exec_lo, 0x00f0000f'); k('s_mov_b32 exec_hi, 0xf0000f00')
        hstore(['buffer_store_dword v25, v24, %s, s76 offen'%WS])
        k('s_mov_b64 exec, -1')
    return o+[st]
cs_l=['v_lshrrev_b32 v26, 4, v1','v_lshlrev_b32 v26, 4, v26','s_lshl_b32 s76, s2, 9','s_add_u32 s76, s76, 0x%x'%CS,
      's_and_b32 s77, s5, 1','s_lshl_b32 s78, s77, 7','s_add_u32 s78, s78, s76','s_xor_b32 s77, s77, 1','s_lshl_b32 s77, s77, 8','s_add_u32 s77, s77, s76']
cs_l+=['buffer_load_dwordx4 %s, v26, %s, %s offen offset:%d'%(v4(CSR+4*b),WS,'s78' if b<4 else 's77',64*(b%4)) for b in range(6)]
PQ=248
PQs=[248,252,24,28]
chk=['v_max3_u32 v22, v%d, v%d, v%d'%(STL,STL+1,STL+2)]
for i in range(3,31,2): chk.append('v_max3_u32 v22, v22, v%d, v%d'%(STL+i,STL+i+1))
chk+=['v_max_u32 v22, v22, v%d'%(STL+31),'v_cmp_eq_u32 vcc, -1, v22']
CA=-2*0.7978845608028654*1.4426950408889634
def tile_dma():
    o=['s_lshl_b32 s76, s4, 2','s_lshr_b32 s77, s5, 3','s_add_u32 s76, s76, s77','s_mul_i32 s76, s76, 81920','s_and_b32 s77, s5, 7','s_mul_i32 s77, s77, 10240','s_add_u32 s43, s76, s77',
       's_bitcmp1_b32 s3, 1','s_cselect_b32 s76, 0x%x, s14'%YB,'s_add_u32 s76, s76, s43','s_and_b32 s77, s3, 1','s_mul_i32 s77, s77, 5120','s_add_u32 s76, s76, s77','s_mov_b32 m0, s64']
    return o
extra={5:publish_stats()[:12],6:publish_stats()[12:],10:[S(x) for x in cs_l[:10]],11:[S(x) for x in cs_l[10:]],
       15:[S(x) for x in st_loads()[:10]],16:[S(x) for x in st_loads()[10:]],18:[S(x) for x in tile_dma()]}
for ks in range(20):
    gaps=[[] for _ in range(24)]
    def put(g,key,x): gaps[g].append((key,x))
    for hh in range(2): put(hh,('w',ks,5),wr(ks,5)[hh])
    if ks+2<20:
        for t,g in enumerate((2,3,6,7)): put(g,('d',ks+2),dma(t))
    if ks+3<20:
        for x,g in zip(dma_pre(ks+3),(22,23)): put(g,None,x)
    if ks+1<20:
        for b in range(5):
            for hh in range(2): put(4*b+4+hh,('w',ks+1,b),wr(ks+1,b)[hh])
        for i in range(8): put(10+i,('x',ks+1,i),xr(ks+1,i>>1)[i&1])
    if ks==19:
        for t in range(4): put(2+2*t,None,'buffer_load_dwordx4 v3, %s, s76 offen offset:%d sc1 lds'%(WS,1024*t))
        put(9,None,'s_add_u32 m0, s64, 4096'); put(10,None,'s_add_u32 s76, s76, 4096'); put(11,None,'buffer_load_dwordx4 v3, %s, s76 offen sc1 lds'%WS)
        for g,x in zip(range(4,24),chk[:-1]): put(g,'st',x)
    ex=list(extra.get(ks,[]))
    if ks%5==2 and ks<15: ex+=[S(x) for x in wbases(ks//5+1)]
    free=[18,19,22,23,4,5,8,9,20,21,2,3,6,7,0,1]
    for g,f in zip(sorted(free[:max(len(ex),1)]),ex): put(g,'f',f)
    i=0
    for b in range(6):
        for q in (range(4) if (b&1)==0 else range(3,-1,-1)):
            if i==0: k.need(T['x',ks],T['w',ks,0],T['w',ks,3])
            if i==16: k.need(T['w',ks,4],T['w',ks,5])
            acc=ACC+4*(6*q+b)
            k('v_mfma_f32_16x16x32_bf16 %s, %s, %s, %s'%(v4(acc),v4(WF+4*b),v4(XS[ks&1]+4*q),'0' if ks==0 else v4(acc)))
            if ks<5 and i==19:
                l1=k.lab('Lsq'); l2=k.lab('Lsd'); cc='0' if ks==0 else v4(SA); X0=XS[ks&1]
                k('s_bitcmp1_b32 s5, 2'); k('s_cbranch_scc0 %s'%l1)
                k('v_mfma_f32_16x16x32_bf16 %s, %s, %s, %s'%(v4(SA),v4(ONE),v4(X0),cc)); k('s_branch %s'%l2)
                k(l1+':'); k('v_mfma_f32_16x16x32_bf16 %s, %s, %s, %s'%(v4(SA),v4(X0),v4(X0),cc)); k(l2+':')
            for key,x in gaps[i]:
                if key=='f': x(); continue
                if key=='st': k(x); continue
                if key and key[0]=='x' and key[2]==0: k.need(T['d',ks+1])
                t=k(x)
                if key and t: T[key[:2] if key[0]=='x' else key]=t
            i+=1
    if ks==4: stamp('G1i0',True)
stamp('G1',True)
k(chk[-1])
k('s_cbranch_vccz L_stok')
poll(st_loads(),chk)
k('L_stok:')
PQ=128
for q in range(4):
    s=STL+8*q
    k('v_pk_add_f32 %s, %s, %s'%(v2(s),v2(s),v2(s+2))); k('v_pk_add_f32 %s, %s, %s'%(v2(s+4),v2(s+4),v2(s+6)))
for q in range(4):
    s=STL+8*q
    k('v_add_f32 v%d, v%d, v%d'%(s,s,s+1)); k('v_add_f32 v%d, v%d, v%d'%(s+4,s+4,s+5))
for q in range(4):
    s=STL+8*q; p=PQ+4*q
    k('v_mul_f32 v%d, 0x%x, v%d'%(p,INV^0x80000000,s+4)); k('v_mul_f32 v%d, 0x%x, v%d'%(s,INV,s))
for q in range(4):
    s=STL+8*q; p=PQ+4*q
    k('v_fma_f32 v%d, -v%d, v%d, v%d'%(s,p,p,s)); k('v_max_f32 v%d, 0, v%d'%(s,s)); k('v_add_f32 v%d, 0x%x, v%d'%(p+1,EPS,s))
for q in range(4): k('v_rsq_f32 v%d, v%d'%(STL+8*q,PQ+4*q+1))
for q in range(4):
    s=STL+8*q; p=PQ+4*q
    k('v_mul_f32 v%d, 0x%x, v%d'%(p+2,fb(CA),s)); k('v_mul_f32 v%d, v%d, v%d'%(s+1,s,s))
for q in range(4):
    s=STL+8*q; p=PQ+4*q
    k('v_mul_f32 v%d, 0x%x, v%d'%(s+1,fb(0.044715),s+1)); k('v_mul_f32 v%d, v%d, v%d'%(p+3,p+2,s+1))
k('v_lshlrev_b32 v2, 4, v1'); k('s_and_b32 s74, s5, 1'); k('s_lshl_b32 s75, s74, 3'); k('v_add_u32 v21, s75, v2')
k('s_lshr_b32 s75, s5, 1'); k('s_mul_i32 s75, s75, 3072'); k('s_add_u32 s75, s75, s15')
k('s_lshl_b32 s76, s4, 4'); k('s_lshl_b32 s77, s3, 2'); k('s_add_u32 s76, s76, s77'); k('s_mul_i32 s76, s76, 49152'); k('s_add_u32 s75, s75, s76')
k('s_lshl_b32 s74, s74, 11'); k('s_and_b32 s76, s5, 3')
TMP=144
for q in range(4):
    p=PQ+4*q; o=STL+8*(q&1)
    items=[(pp,h2) for pp in range(3) for h2 in range(2)]
    G=lambda pp,h2: ACC+4*(6*q+2*pp)+2*h2
    U=lambda pp,h2: ACC+4*(6*q+2*pp+1)+2*h2
    t=lambda i: TMP+2*i
    for i,(pp,h2) in enumerate(items): k('v_pk_fma_f32 %s, %s, %s, %s op_sel_hi:[0,1,1]'%(v2(G(pp,h2)),v2(p),v2(CSR+8*pp+2*h2),v2(G(pp,h2))))
    for i,(pp,h2) in enumerate(items): k('v_pk_mul_f32 %s, %s, %s'%(v2(t(i)),v2(G(pp,h2)),v2(G(pp,h2))))
    for i,(pp,h2) in enumerate(items): k('v_pk_fma_f32 %s, %s, %s, %s op_sel:[0,1,0] op_sel_hi:[1,1,0]'%(v2(t(i)),v2(t(i)),v2(p+2),v2(p+2)))
    for i,(pp,h2) in enumerate(items): k('v_pk_mul_f32 %s, %s, %s'%(v2(t(i)),v2(t(i)),v2(G(pp,h2))))
    for i,(pp,h2) in enumerate(items):
        k('v_exp_f32 v%d, v%d'%(t(i),t(i))); k('v_exp_f32 v%d, v%d'%(t(i)+1,t(i)+1))
        k('v_pk_fma_f32 %s, %s, %s, %s op_sel_hi:[0,1,1]'%(v2(U(pp,h2)),v2(p),v2(CSR+8*pp+4+2*h2),v2(U(pp,h2))))
    for i,(pp,h2) in enumerate(items): k('v_pk_fma_f32 %s, %s, %s, %s op_sel:[0,1,1] op_sel_hi:[1,1,1]'%(v2(t(i)),v2(t(i)),v2(p),v2(p)))
    for i,(pp,h2) in enumerate(items):
        k('v_rcp_f32 v%d, v%d'%(t(i),t(i))); k('v_rcp_f32 v%d, v%d'%(t(i)+1,t(i)+1))
        k('v_pk_mul_f32 %s, %s, %s'%(v2(G(pp,h2)),v2(G(pp,h2)),v2(U(pp,h2))))
    for i,(pp,h2) in enumerate(items): k('v_pk_mul_f32 %s, %s, %s'%(v2(G(pp,h2)),v2(G(pp,h2)),v2(t(i))))
    for i,(pp,h2) in enumerate(items): k('v_cvt_pk_bf16_f32 v%d, v%d, v%d'%(o+i,G(pp,h2),G(pp,h2)+1))
    k('s_xor_b32 s77, s76, %d'%q); k('s_mul_i32 s77, s77, 49152'); k('s_add_u32 s77, s77, s75'); k('s_add_u32 s78, s77, s74')
    hstore(['buffer_store_dwordx4 %s, v2, %s, s78 offen'%(v4(o),WS),'buffer_store_dwordx2 %s, v21, %s, s77 offen offset:1024'%(v2(o+4),WS)])
stamp('G1epi',True)
A2=16; HF=96; NFR=24; P1=192; P2=212; RES=232; YY=242; P3=192
k('s_lshl_b32 s64, s4, 2'); k('s_lshr_b32 s65, s5, 3'); k('s_add_u32 s64, s64, s65')
k('s_and_b32 s69, s5, 7')
k('s_mul_i32 s66, s64, %d'%(4*49152)); k('s_mul_i32 s67, s3, 12288'); k('s_add_u32 s66, s66, s67'); k('s_add_u32 s66, s66, s15')
for sl in range(3):
    k('s_add_u32 s71, s3, %d'%(sl+1)); k('s_and_b32 s71, s71, 3'); k('s_mul_i32 s%d, s71, 49152'%(60+sl)); k('s_add_u32 s%d, s%d, s66'%(60+sl,60+sl))
    k('s_mul_i32 s71, s71, 5120'); k('s_add_u32 s71, s71, %d'%(LR+(20480 if sl==1 else 0))); k('v_add_u32 v%d, s71, v2'%(4+sl))
k('s_mul_i32 s63, s3, 49152'); k('s_add_u32 s63, s63, s66')
k('s_mul_i32 s71, s3, 5120'); k('s_add_u32 s71, s71, %d'%LR); k('v_add_u32 v7, s71, v2')
k('v_and_b32 v8, 15, v1'); k('v_lshrrev_b32 v9, 4, v1')
k('v_lshrrev_b32 v10, 1, v9'); k('s_lshl_b32 s71, s3, 1'); k('v_add_u32 v10, s71, v10'); k('v_and_b32 v11, 7, v8'); k('v_xor_b32 v10, v10, v11')
k('v_lshlrev_b32 v10, 4, v10'); k('v_and_b32 v11, 1, v9'); k('v_lshl_add_u32 v10, v11, 3, v10'); k('v_lshl_add_u32 v10, v8, 7, v10'); k('v_add_u32 v14, %d, v10'%LR)
k('v_bfe_u32 v11, v8, 3, 1'); k('v_mul_u32_u24 v11, 3072, v11'); k('v_add_u32 v15, v14, v11')
k('s_mov_b32 s71, 0xffff0000')
k('s_waitcnt vmcnt(0) lgkmcnt(0)'); k('s_barrier')
for which,dst in ((0,RES),(1,YY)):
    for nb in range(5):
        k('ds_read_b64 %s, v%d offset:%d'%(v2(dst+2*nb),15 if nb==2 else 14,16384*which+2048*nb+(3072 if nb>2 else 0)))
k('s_cmp_lg_u32 s3, 0'); k('s_cbranch_scc1 L_s4b')
k('s_lshl_b32 s68, s13, 1'); k('s_add_u32 s68, s68, 3')
island_flag_store('s68',16); island_poll('s68',16)
k('L_s4b:')
k('s_waitcnt lgkmcnt(0)'); k('s_barrier')
stamp('S4',True)
if OPT['stop']<=2: k('s_branch L_fin')

k.reset_counts()
LOOK=OPT.get('look',8)
TH={}
def hload(n):
    sl,i=divmod(n,12)
    if i%4==0 and i: k('s_add_u32 s%d, s%d, 4096'%(60+sl,60+sl))
    TH[n]=k('buffer_load_dwordx4 %s, v2, %s, s%d offen offset:%d%s'%(v4(HF+4*(n%NFR)),WS,60+sl,1024*(i%4),LP))
for n in range(LOOK): hload(n)
def run(sl,fill,cin=None,start=2):
    i=0
    for kap in range(12):
        n=12*sl+kap
        for nb in range(5):
            acc=A2+20*sl+4*nb
            c=v4(acc) if kap else ('0' if cin is None else v4(cin+4*nb))
            k.need(TH[n])
            k('v_mfma_f32_16x16x32_bf16 %s, %s, %s, %s'%(v4(acc),v4(HF+4*(n%NFR)),a4(4*(5*kap+nb)),c))
            if nb==0 and n+LOOK<48: hload(n+LOOK)
            elif i>=start and fill: fill.pop(0)()
            i+=1
    for f in fill: f()
def wr_acc(sl): return [S('ds_write_b128 v%d, %s offset:%d'%(4+sl,v4(A2+20*sl+4*nb),1024*nb)) for nb in range(5)]
def rd_part(dst,off,key):
    o=[]
    for nb in range(5):
        def f(nb=nb): TH[key]=k('ds_read_b128 %s, v7 offset:%d'%(v4(dst+4*nb),off+1024*nb))
        o.append(f)
    return o
stamp('G2pro',True)
run(0,[])
stamp('G2s0',True)
run(1,wr_acc(0),start=5)
k('s_waitcnt lgkmcnt(0)'); k('s_barrier')
stamp('G2s1',True)
f=rd_part(P1,0,'p1')+wr_acc(1)
for nb in range(5):
    for h2 in range(2):
        r=RES+2*nb+h2
        def f1(nb=nb,h2=h2):
            k.need(TH['p1']); k('v_pk_add_f32 %s, %s, v[10:11]'%(v2(P1+4*nb+2*h2),v2(P1+4*nb+2*h2)))
        f+=[S('v_lshlrev_b32 v10, 16, v%d'%r),S('v_and_b32 v11, s71, v%d'%r),f1]
run(2,f,start=0)
k('s_waitcnt lgkmcnt(0)'); k('s_barrier')
stamp('G2s2',True)
YF=96
f=rd_part(P2,20480,'p2')+wr_acc(2)
run(3,f,cin=P1,start=0)
k('s_waitcnt lgkmcnt(0)'); k('s_barrier')
for ff in rd_part(P3,0,'p3'): ff()
V=A2+60
for nb in range(5):
    for h2 in range(2): k('v_pk_add_f32 %s, %s, %s'%(v2(V+4*nb+2*h2),v2(V+4*nb+2*h2),v2(P2+4*nb+2*h2)))
k.need(TH['p3'])
for nb in range(5):
    for h2 in range(2): k('v_pk_add_f32 %s, %s, %s'%(v2(V+4*nb+2*h2),v2(V+4*nb+2*h2),v2(P3+4*nb+2*h2)))
stamp('G2',True)
k('s_cmp_eq_u32 s13, 1'); k('s_cbranch_scc1 L_out')
SS=16
for h2 in range(2):
    k('v_pk_add_f32 %s, %s, %s'%(v2(SS+2*h2),v2(V+2*h2),v2(V+4+2*h2))); k('v_pk_mul_f32 %s, %s, %s'%(v2(SS+4+2*h2),v2(V+2*h2),v2(V+2*h2)))
for nb in range(1,5):
    for h2 in range(2):
        if nb>1: k('v_pk_add_f32 %s, %s, %s'%(v2(SS+2*h2),v2(SS+2*h2),v2(V+4*nb+2*h2)))
        k('v_pk_fma_f32 %s, %s, %s, %s'%(v2(SS+4+2*h2),v2(V+4*nb+2*h2),v2(V+4*nb+2*h2),v2(SS+4+2*h2)))
for sh in (8,4,2,1):
    for i in range(8): k('v_add_f32_dpp v%d, v%d, v%d row_ror:%d row_mask:0xf bank_mask:0xf'%(SS+i,SS+i,SS+i,sh))
k('s_lshl_b32 s70, s64, 2'); k('s_add_u32 s70, s70, s3'); k('s_lshl_b32 s70, s70, 10'); k('s_add_u32 s70, s70, 0x%x'%EX)
k('s_lshl_b32 s72, s69, 5'); k('s_add_u32 s72, s72, s70'); k('v_lshlrev_b32 v10, 8, v9')
k('s_mov_b32 s73, 0x00010001'); k('s_mov_b32 exec_lo, s73'); k('s_mov_b32 exec_hi, s73')
hstore(['buffer_store_dwordx4 %s, v10, %s, s72 offen'%(v4(SS),WS),'buffer_store_dwordx4 %s, v10, %s, s72 offen offset:16'%(v4(SS+4),WS)])
k('s_mov_b64 exec, -1')
k('v_and_b32 v11, 7, v1'); k('v_lshl_add_u32 v10, v11, 5, v10'); k('v_bfe_u32 v11, v1, 3, 1'); k('v_lshl_add_u32 v10, v11, 4, v10')
YF=32
for nb in range(5):
    for h2 in range(2):
        k('v_lshlrev_b32 v%d, 16, v%d'%(YF+4*nb+2*h2,YY+2*nb+h2)); k('v_and_b32 v%d, s71, v%d'%(YF+4*nb+2*h2+1,YY+2*nb+h2))
poll(['buffer_load_dwordx4 v[24:27], v10, %s, s70 offen sc1'%WS],['v_max_u32 v12, v24, v25','v_max3_u32 v12, v12, v26, v27','v_cmp_eq_u32 vcc, -1, v12'])
for m in ('quad_perm:[1,0,3,2]','quad_perm:[2,3,0,1]','row_half_mirror'):
    for i in range(4): k('v_add_f32_dpp v%d, v%d, v%d %s row_mask:0xf bank_mask:0xf'%(24+i,24+i,24+i,m))
k('v_cmp_eq_u32 vcc, 0, v11')
for i in range(4): k('v_mov_b32_dpp v%d, v%d row_ror:8 row_mask:0xf bank_mask:0xf'%(28+i,24+i))
for i in range(4): k('v_cndmask_b32 v%d, v%d, v%d, vcc'%(SS+i,28+i,24+i))
for i in range(4): k('v_cndmask_b32 v%d, v%d, v%d, vcc'%(SS+4+i,24+i,28+i))
k('s_mov_b32 s72, 0x%x'%INV); k('s_mov_b32 s73, s72')
for i in range(4): k('v_pk_mul_f32 %s, %s, s[72:73]'%(v2(SS+2*i),v2(SS+2*i)))
for i in range(4): k('v_fma_f32 v%d, -v%d, v%d, v%d'%(SS+4+i,SS+i,SS+i,SS+4+i))
for i in range(4): k('v_max_f32 v%d, 0, v%d'%(SS+4+i,SS+4+i))
for i in range(4): k('v_add_f32 v%d, 0x%x, v%d'%(SS+4+i,EPS,SS+4+i))
for i in range(4): k('v_rsq_f32 v%d, v%d'%(SS+4+i,SS+4+i))
for i in range(4): k('v_mul_f32_e64 v%d, -v%d, v%d'%(SS+i,SS+i,SS+4+i))
for nb in range(5):
    for h2 in range(2): k('v_pk_fma_f32 %s, %s, %s, %s'%(v2(52+4*nb+2*h2),v2(V+4*nb+2*h2),v2(SS+4+2*h2),v2(SS+2*h2)))
for nb in range(5):
    for h2 in range(2): k('v_pk_fma_f32 %s, %s, %s, %s'%(v2(V+4*nb+2*h2),v2(52+4*nb+2*h2),v2(YF+4*nb+2*h2),v2(V+4*nb+2*h2)))
    for h2 in range(2): k('v_cvt_pk_bf16_f32 v%d, v%d, v%d'%(52+2*nb+h2,V+4*nb+2*h2,V+4*nb+2*h2+1))
    k('ds_write_b64 v14, %s offset:%d'%(v2(52+2*nb),20480+2048*nb))
k('s_lshl_b32 s70, s3, 10'); k('s_add_u32 s72, s70, %d'%(LR+20480)); k('v_add_u32 v10, s72, v2')
k('s_add_u32 s70, s70, s43'); k('s_add_u32 s70, s70, %d'%X3); k('s_add_u32 s72, s70, 4096'); k('s_add_u32 s73, s70, 8192')
k('s_waitcnt lgkmcnt(0)'); k('s_barrier')
for t in range(3): k('ds_read_b128 %s, v10 offset:%d'%(v4(16+4*t),4096*t))
k('s_waitcnt lgkmcnt(1)')
hstore(['buffer_store_dwordx4 %s, v3, %s, %s offen'%(v4(16+4*t),WS,('s70','s72')[t]) for t in range(2)])
k('s_cmp_ge_u32 s3, 2'); k('s_cbranch_scc1 L_x3d')
k('s_waitcnt lgkmcnt(0)')
hstore(['buffer_store_dwordx4 %s, v3, %s, s73 offen'%(v4(24),WS)])
k('L_x3d:')
stamp('epi1')
if OPT['stop']<=3: k('s_branch L_fin')
k('s_mov_b32 s13, 1'); k('s_mov_b32 s14, 0x%x'%X3); k('s_mov_b32 s15, 0x%x'%H2); k('s_mov_b32 s42, 0x%x'%ST2)
k('s_branch L_pre')
k('L_out:')
k.reset_counts()
for nb in range(5):
    for h2 in range(2): k('v_cvt_pk_bf16_f32 v%d, v%d, v%d'%(16+2*nb+h2,V+4*nb+2*h2,V+4*nb+2*h2+1))
k('s_mul_i32 s67, s3, 5120'); k('s_add_u32 s67, s67, %d'%(LR+20480))
k('v_lshlrev_b32 v10, 5, v8'); k('v_lshl_add_u32 v10, v9, 3, v10'); k('v_add_u32 v10, s67, v10')
for nb in range(5): k('ds_write_b64 v10, %s offset:%d'%(v2(16+2*nb),512*nb))
k('v_bfe_u32 v11, v1, 2, 2'); k('v_and_b32 v12, 3, v1'); k('v_lshl_add_u32 v11, v9, 3, v11'); k('v_lshlrev_b32 v11, 5, v11'); k('v_lshl_add_u32 v11, v12, 3, v11'); k('v_add_u32 v11, s67, v11')
for t in range(3):
    for hh in range(2): tr=k('ds_read_b64_tr_b16 %s, v11 offset:%d'%(v2(32+4*t+2*hh),1024*t+128*hh))
k.srd(44,36,TB)
k('v_mul_u32_u24 v10, 208, v8'); k('v_lshl_add_u32 v10, v9, 4, v10'); k('v_add_u32 v10, s67, v10')
k('s_lshl_b32 s70, s64, 6'); k('s_lshl_b32 s72, s3, 4'); k('s_add_u32 s70, s70, s72'); k('s_mul_i32 s70, s70, 1280'); k('s_mul_i32 s72, s69, 160'); k('s_add_u32 s70, s70, s72')
for t in range(3):
    k('v_add_u32 v12, %d, v1'%(64*t)); k('v_mul_u32_u24 v13, 6554, v12'); k('v_lshrrev_b32 v13, 16, v13'); k('v_mul_u32_u24 v14, 10, v13'); k('v_sub_u32 v12, v12, v14')
    k('v_lshlrev_b32 v12, 4, v12'); k('v_mad_u32_u24 v%d, v13, s%d, v12'%(20+t,72)) if False else None
    k('v_mul_u32_u24 v14, 208, v13'); k('v_add3_u32 v%d, v14, v12, s67'%(16+t)); k('v_mul_u32_u24 v14, 1280, v13'); k('v_add3_u32 v%d, v14, v12, s70'%(20+t))
k.need(tr)
for t in range(3): k('ds_write_b128 v10, %s offset:%d'%(v4(32+4*t),64*t))
rr=[k('ds_read_b128 %s, v%d'%(v4(44+4*t),16+t)) for t in range(3)]
for t in range(3):
    k.need(rr[t])
    if t==2: k('s_mov_b32 exec_hi, 0')
    k('buffer_store_dwordx4 %s, v%d, s[44:47], 0 offen'%(v4(44+4*t),20+t))
k('s_mov_b64 exec, -1')
k('L_fin:')
if OPT['stamps']:
    k('s_waitcnt vmcnt(0)')
    stamp('end')
    k('s_memrealtime s[98:99]'); k('s_waitcnt lgkmcnt(0)'); k('v_writelane_b32 v0, s98, 63')
    k('s_lshl_b32 s70, s2, 2'); k('s_add_u32 s70, s70, s3'); k('s_lshl_b32 s70, s70, 8'); k('s_add_u32 s70, s70, 0x%x'%STAMP)
    k('v_lshlrev_b32 v2, 2, v1'); k('buffer_store_dword v0, v2, %s, s70 offen'%WS)
    json.dump(SN,open('stamps.json','w'))
k('L_end:')
k.end(NAME+'_kernel',512,100,256)
n=k.fix(verbose=bool(OPT.get('verbose')))
hdr=''.join(l for l in open('cdna_kernels/%s.s.ref'%NAME).readlines() if l.startswith(';') and '@launch' not in l and 'Override' not in l and 'grid=ceil' not in l)
open(sys.argv[1],'w').write(k.text(hdr))
print('instructions',sum(1 for i in k.ins if i.mn and not i.label),'nop states added',n)
```

```python
import sys, struct, json
from klib import K, I
NAME='interleave_layers__ssm_conv_h3__glu_gated_geglu__prompt'
OPT=dict(stamps=0, stop=99, fast=1)
for x in sys.argv[2:]:
    kx,vx=x.split('='); OPT[kx]=int(vx)
def fb(x): return struct.unpack('<I',struct.pack('<f',x))[0]

KVT=0x000000; QT=0x280000; X1=0x500000; YB=0x780000; X3=0xA00000; WDF=0xC80000
QR=0xE60000; QNM=0xE62000; ST1=0xE64000; ST2=0xE74000; EX=0xE84000; CS=0xEA4000
FLG=0xEC4000
H1=0x1000000; H2=0x1600000; STAMP=0x2000000
WSB=0x10000000; TB=2048*1280
LW=0; LWU=61440; LR=122880
LA=LR
LH=LR+24576
LCNT=LR+24576+3*4224
C_A=0; C_CV=4; C_MODE=8; C_S1=12; C_G0=16; C_A2=20; C_GO=24
SPIN=OPT.get('spin',1<<16)
INV=0x3acccccd
EPS=0x3727c5ac

k=K()
k.launch.append('; @launch grid=(256,1,1) block=(256,1,1) lds=163840')
k.begin(NAME+'_kernel')
SN={}
def stamp(name,lay=False):
    if OPT['stamps']:
        idx=SN.setdefault(name,len(SN))
        k('s_memtime s[98:99]'); k('s_waitcnt lgkmcnt(0)')
        if lay:
            k('s_mul_i32 s97, s13, 16'); k('s_add_u32 s97, s97, %d'%idx); k('s_mov_b32 s96, m0'); k('s_mov_b32 m0, s97'); k('v_writelane_b32 v0, s98, m0'); k('s_mov_b32 m0, s96')
        else: k('v_writelane_b32 v0, s98, %d'%idx)
def v4(r): return 'v[%d:%d]'%(r,r+3)
def v2(r): return 'v[%d:%d]'%(r,r+1)
def a4(r): return 'a[%d:%d]'%(r,r+3)
def S(x): return (lambda: k(x))
def K_(lst):
    for x in lst: t=k(x)
    return t
WS='s[8:11]'
LP=' sc1' if OPT.get('ldsc1',0) else ''

def hstore(instr):
    l1=k.lab('Lf'); l2=k.lab('Lg')
    k('s_cmp_eq_u32 s12, 1'); k('s_cbranch_scc1 %s'%l1)
    nv=k.nv
    for x in instr: k(x+' sc1')
    k('s_branch %s'%l2); k(l1+':')
    k.nv=nv
    for x in instr: t=k(x)
    k(l2+':')
    return t
def poll(loads, check):
    l=k.lab('Lpoll'); d=k.lab('Lpd')
    k('s_mov_b32 s79, 0'); k(l+':')
    for x in loads: k(x)
    k('s_waitcnt vmcnt(0)')
    for x in check: k(x)
    k('s_cbranch_vccz %s'%d)
    k('s_add_u32 s79, s79, 1'); k('s_cmp_lt_u32 s79, s80'); k('s_cbranch_scc1 %s'%l)
    k('s_mov_b32 s80, 0')
    k(d+':')
def flag_addr(line):
    k('s_lshl_b32 s77, s4, 9'); k('s_lshl_b32 s76, s5, 2'); k('s_add_u32 s77, s77, s76'); k('s_add_u32 s77, s77, 0x%x'%(FLG+line))
def island_flag_store(phase, tmp, line=0, sc1=False):
    k('s_add_u32 s78, s6, %s'%phase); k('s_add_u32 s78, s78, s59')
    k('v_mov_b32 v%d, s78'%tmp); k('v_mov_b32 v%d, 0'%(tmp+1))
    flag_addr(line)
    k('s_mov_b64 exec, 1')
    x='buffer_store_dword v%d, v%d, %s, s77 offen'%(tmp,tmp+1,WS)
    if sc1: k(x+' sc1')
    else: hstore([x])
    k('s_mov_b64 exec, -1')
def island_poll(phase, tmp, nmem=32, line=0):
    k('v_min_u32 v%d, %d, v1'%(tmp,nmem-1)); k('v_lshlrev_b32 v%d, 2, v%d'%(tmp,tmp))
    k('s_lshl_b32 s77, s4, 9'); k('s_add_u32 s77, s77, 0x%x'%(FLG+line))
    poll(['buffer_load_dword v%d, v%d, %s, s77 offen sc1'%(tmp+1,tmp,WS)],
         ['v_subrev_u32 v%d, s6, v%d'%(tmp+1,tmp+1),'v_and_b32 v%d, -9, v%d'%(tmp+2,tmp+1),'v_subrev_u32 v%d, %s, v%d'%(tmp+2,phase,tmp+2),'v_cmp_le_u32 vcc, 6, v%d'%(tmp+2)])
def tag_from(v):
    if v is None: k('s_mov_b32 s6, s84'); k('s_mov_b32 s59, s85')
    else: k('v_readlane_b32 s6, v%d, s4'%v); k('v_readlane_b32 s59, v%d, s4'%(v+1))
    k('s_cmp_eq_u32 s59, s7'); k('s_cselect_b32 s59, 0, 8'); k('s_cselect_b32 s12, 1, 0')
    k('s_cmp_eq_u32 s6, 0'); k('s_cselect_b32 s12, 0, s12')
    if not OPT['fast']: k('s_mov_b32 s12, 0'); k('s_mov_b32 s59, 8')
def lds_wait(off,tmp):
    l=k.lab('Llw'); d=k.lab('Lld')
    k('v_mov_b32 v%d, %d'%(tmp,LCNT+off)); k('s_mov_b32 s79, 0'); k(l+':')
    k('ds_read_b32 v%d, v%d'%(tmp+1,tmp)); k('s_waitcnt lgkmcnt(0)')
    k('v_cmp_eq_u32 vcc, 0, v%d'%(tmp+1)); k('s_cbranch_vccz %s'%d)
    k('s_add_u32 s79, s79, 1'); k('s_lshr_b32 s81, s79, 3'); k('s_cmp_lt_u32 s81, s80'); k('s_cbranch_scc1 %s'%l)
    k('s_mov_b32 s80, 0')
    k(d+':')
def lds_set(off,val,tmp):
    k('v_mov_b32 v%d, %d'%(tmp,LCNT+off)); k('v_mov_b32 v%d, %s'%(tmp+1,val)); k('ds_write_b32 v%d, v%d'%(tmp,tmp+1))
def mode_from(v):
    k('v_readfirstlane_b32 s12, v%d'%v); k('s_lshr_b32 s12, s12, 1')
def last_arriver(cnt_off, n, tmp, body):
    k('v_mov_b32 v%d, %d'%(tmp,LCNT+cnt_off)); k('v_mov_b32 v%d, 1'%(tmp+1))
    k('s_mov_b64 exec, 1')
    t=k('ds_add_rtn_u32 v%d, v%d, v%d'%(tmp+2,tmp,tmp+1))
    k('s_mov_b64 exec, -1')
    k.need(t)
    k('v_readfirstlane_b32 s78, v%d'%(tmp+2))
    l=k.lab('Lnl')
    k('s_add_u32 s78, s78, 1'); k('s_cmp_lg_u32 s78, %s'%n); k('s_cbranch_scc1 %s'%l)
    body()
    k(l+':')
def g0_chk(r,e): return ['v_xor_b32 v%d, v%d, v%d'%(r+i,r+i,e) for i in range(4)]+['v_or_b32 v%d, v%d, v%d'%(r,r,r+1),'v_or3_b32 v%d, v%d, v%d, v%d'%(r,r,r+2,r+3),'v_cmp_ne_u32 vcc, 0, v%d'%r]
WDFN=[0]
def wdf_all(voff):
    if not OPT.get('wrot',0):
        for i in range(60):
            if i%4==0: k('s_add_u32 s75, s74, %d'%(i*1024))
            k('buffer_load_dwordx4 %s, v%d, %s, s75 offen offset:%d%s'%(a4(4*i),voff,WS,(i%4)*1024,' sc1' if OPT.get('wsc',1) else ''))
        return
    WDFN[0]+=1; n=WDFN[0]
    k('s_lshr_b32 s76, s5, 3'); k('s_mov_b32 s77, 0')
    k('L_wd%d:'%n)
    for bl in range(1,4): k('s_cmp_eq_u32 s76, %d'%bl); k('s_cbranch_scc1 L_wd%d_%d'%(n,bl))
    for bl in range(4):
        k('L_wd%d_%d:'%(n,bl))
        for i in range(15):
            if i%4==0: k('s_add_u32 s75, s74, %d'%((15*bl+i)*1024))
            k('buffer_load_dwordx4 %s, v%d, %s, s75 offen offset:%d sc1'%(a4(4*(15*bl+i)),voff,WS,(i%4)*1024))
        if bl<3: k('s_branch L_wd%d_n'%n)
    k('L_wd%d_n:'%n)
    k('s_add_u32 s76, s76, 1'); k('s_and_b32 s76, s76, 3'); k('s_add_u32 s77, s77, 1'); k('s_cmp_lt_u32 s77, 4'); k('s_cbranch_scc1 L_wd%d'%n)
def wdf_base():
    k('s_and_b32 s74, s5, 7'); k('s_mul_i32 s74, s74, 48'); k('s_mul_i32 s75, s3, 12'); k('s_add_u32 s74, s74, s75')
    k('s_mul_i32 s74, s74, 5120'); k('s_add_u32 s74, s74, 0x%x'%WDF)

k('s_cmp_ge_u32 s2, 256'); k('s_cbranch_scc1 L_end')
k('s_load_dwordx16 s[16:31], s[0:1], 0'); k('s_load_dwordx8 s[32:39], s[0:1], 64'); k('s_load_dwordx2 s[40:41], s[0:1], 96')
k('v_lshrrev_b32 v2, 6, v0'); k('v_and_b32 v1, 63, v0')
k('v_readfirstlane_b32 s3, v2')
k('s_and_b32 s4, s2, 7'); k('s_lshr_b32 s5, s2, 3')
k('s_getreg_b32 s7, hwreg(HW_REG_XCC_ID, 0, 4)')
k('s_mov_b32 s12, 0'); k('s_mov_b32 s13, 0'); k('s_mov_b32 s80, %d'%SPIN)
k('s_mov_b32 s14, 0x%x'%X1); k('s_mov_b32 s15, 0x%x'%H1); k('s_mov_b32 s42, 0x%x'%ST1)
k('s_waitcnt lgkmcnt(0)')
k.srd(8,40,WSB)
stamp('start')
if OPT['stamps']: k('s_memrealtime s[98:99]'); k('s_waitcnt lgkmcnt(0)'); k('v_writelane_b32 v0, s98, 62')
k('s_cmp_eq_u32 s3, 3'); k('s_cbranch_scc1 L_loader')

k.srd(44,18,TB); k.srd(48,20,TB); k.srd(56,22,640*8)
k('v_and_b32 v2, 3, v1'); k('v_lshrrev_b32 v3, 2, v1')
k('s_lshl_b32 s64, s3, 2'); k('v_add_u32 v4, s64, v2'); k('v_min_u32 v4, 9, v4')
k('s_mul_i32 s65, s4, 80'); k('v_lshl_add_u32 v4, v4, 3, s65')
k('s_mul_i32 s66, s5, %d'%(64*1280)); k('v_mul_u32_u24 v5, %d, v3'%(4*1280))
k('v_lshl_add_u32 v5, v4, 1, v5'); k('v_add_u32 v5, s66, v5')
k('v_subrev_u32 v6, 3840, v5'); k('v_lshlrev_b32 v7, 3, v4')
tk=[]
for r in range(4): tk.append(k('buffer_load_dwordx4 %s, v5, s[44:47], 0 offen offset:%d'%(v4(28+4*r),1280*r)))
tv=[k('buffer_load_dwordx4 %s, v5, s[48:51], 0 offen offset:%d'%(v4(44+4*r),1280*r)) for r in range(4)]
for r in range(3): tk.append(k('buffer_load_dwordx4 %s, v6, s[44:47], 0 offen offset:%d'%(v4(16+4*r),1280*r)))
tw=[k('buffer_load_dwordx4 %s, v7, s[56:59], 0 offen offset:%d'%(v4(76+4*r),16*r)) for r in range(4)]
k('s_barrier')
k.srd(52,16,TB); k.srd(60,24,TB)
k('s_mul_i32 s67, s5, 3'); k('s_add_u32 s67, s67, s3'); k('s_min_u32 s68, s67, 79'); k('s_add_u32 s68, s65, s68')
k('v_lshlrev_b32 v7, 4, v1')
k('s_mul_i32 s69, s3, 4224'); k('s_add_u32 s69, s69, %d'%LH)
k('s_and_b32 s71, s68, -2'); k('s_lshl_b32 s71, s71, 1'); k('s_load_dword s72, s[26:27], s71')
k('v_mov_b32 v8, 0'); k('v_mov_b32 v9, 0'); k('v_lshlrev_b32 v10, 3, v1'); k('v_add_u32 v10, s69, v10')
k('s_mov_b64 exec, 15'); k('ds_write_b64 v10, v[8:9]'); k('s_mov_b64 exec, -1')
k('s_mov_b32 s86, 0x05040100'); k('s_mov_b32 s87, 0x07060302'); k('s_mov_b32 s64, 0xffff0000')
k('s_lshl_b32 s66, s3, 13'); k('s_add_u32 s66, s66, %d'%LA)
k('v_lshrrev_b32 v8, 1, v3'); k('v_lshlrev_b32 v9, 1, v2'); k('v_xor_b32 v8, v8, v9'); k('v_lshlrev_b32 v8, 4, v8')
k('v_and_b32 v9, 1, v3'); k('v_lshl_add_u32 v8, v9, 3, v8'); k('v_lshl_add_u32 v8, v2, 10, v8'); k('v_add_u32 v8, s66, v8')
k('v_lshrrev_b32 v9, 3, v1'); k('v_and_b32 v10, 7, v1')
k('v_lshlrev_b32 v11, 7, v9'); k('v_add_u32 v11, s66, v11')
k('s_lshl_b32 s70, s3, 5'); k('s_add_u32 s70, s70, s65')
k('v_add_u32 v12, s70, v9'); k('v_lshlrev_b32 v12, 12, v12'); k('v_lshl_add_u32 v12, v10, 4, v12')
k('s_lshl_b32 s70, s5, 7'); k('v_add_u32 v12, s70, v12')
k('s_waitcnt lgkmcnt(0)')
k('s_bitcmp1_b32 s68, 0'); k('s_cselect_b32 s70, 0, 16'); k('s_lshl_b32 s72, s72, s70'); k('s_and_b32 s72, s72, 0xffff0000'); k('s_mov_b32 s73, s72')
k('s_lshl_b32 s83, s4, 3')
k.need(tk[0])
k('s_load_dwordx2 s[84:85], s[38:39], s83')
stamp('Ak0')
k.need(tk,tw)
stamp('Akv')
P=96; KS=112; VV=128; OUT=144
for dd in range(4):
    for par in range(2):
        sel='s86' if par==0 else 's87'
        for s in range(-2,4):
            k('v_perm_b32 v%d, v%d, v%d, %s'%(P+8*par+s+2, 16+4*(s-1+3)+dd, 16+4*(s+3)+dd, sel))
    for par in range(2):
        d=2*dd+par
        for s in range(4): k('v_dot2_f32_bf16 v%d, v%d, v%d, 0'%(KS+2*s+par, P+8*par+s, 76+2*d+1))
    for s in range(4):
        k('v_lshlrev_b32 v%d, 16, v%d'%(VV+2*s,44+4*s+dd)); k('v_and_b32 v%d, s64, v%d'%(VV+2*s+1,44+4*s+dd))
    for par in range(2):
        d=2*dd+par
        for s in range(4): k('v_dot2_f32_bf16 v%d, v%d, v%d, v%d'%(KS+2*s+par, P+8*par+s+2, 76+2*d, KS+2*s+par))
    o=OUT+4*(dd&1)
    k('s_nop 1')
    for s in range(4): k('v_pk_mul_f32 %s, %s, %s'%(v2(KS+2*s),v2(KS+2*s),v2(VV+2*s)))
    for par in range(2):
        for sp in range(2): k('v_cvt_pk_bf16_f32 v%d, v%d, v%d'%(o+2*par+sp, KS+4*sp+par, KS+4*sp+2+par))
    for par in range(2): k('ds_write_b64 v8, %s offset:%d'%(v2(o+2*par),(2*dd+par)*128))
k('s_waitcnt lgkmcnt(0)')
rd=[]
for t in range(4):
    k('v_xor_b32 v13, %d, v10'%(2*t)); k('v_lshl_add_u32 v%d, v13, 4, v11'%(96+t))
    rd.append(k('ds_read_b128 %s, v%d offset:%d'%(v4(16+4*t),96+t,1024*t)))
tag_from(None)
k('v_add_u32 v13, 0x10000, v12')
def a_stores(reg,base,nm):
    k('s_mov_b32 s76, %d'%base); k('s_mov_b32 s77, %d'%(base+32768))
    k('s_waitcnt lgkmcnt(0)')
    hstore(['buffer_store_dwordx4 %s, v12, %s, %s offen'%(v4(reg+4*t),WS,('s76','s77')[t]) for t in range(2)])
    k('s_cmp_eq_u32 s3, 2'); k('s_cbranch_scc1 %s'%nm)
    hstore(['buffer_store_dwordx4 %s, v13, %s, %s offen'%(v4(reg+8+4*t),WS,('s76','s77')[t]) for t in range(2)])
    k(nm+':')
a_stores(16,KVT,'L_akv')
stamp('Acmp')
k.reset_counts()
tq=[k('buffer_load_dwordx4 %s, v5, s[52:55], 0 offen offset:%d'%(v4(60+4*r),1280*r)) for r in range(4)]
k('s_add_u32 m0, s69, 32'); k('s_lshl_b32 s70, s68, 12')
for t in range(4): k('buffer_load_dwordx4 v7, s[60:63], s70 offen offset:%d lds'%(1024*t))
k.srd(52,38,256)
k('s_waitcnt vmcnt(8)')
stamp('Aq')
def kv_flag():
    k('s_cmp_lg_u32 s6, 0'); k('s_cbranch_scc1 L_tagok')
    k('v_and_b32 v228, 7, v1'); k('v_lshlrev_b32 v228, 3, v228')
    poll(['buffer_load_dwordx2 v[14:15], v228, s[52:55], 0 offen sc1'],['v_cmp_eq_u32 vcc, 0, v14'])
    tag_from(14)
    k('L_tagok:')
    island_flag_store('1',228)
sv=(k.nv,k.dv)
last_arriver(C_A,'3',224,kv_flag)
k.nv,k.dv=sv
k.need(tq)
stamp('Atag')
for dd in range(4):
    o=OUT+4*(dd&1)
    for par in range(2):
        sel='s86' if par==0 else 's87'
        for sp in range(2): k('v_perm_b32 v%d, v%d, v%d, %s'%(o+2*par+sp, 60+4*(2*sp+1)+dd, 60+4*(2*sp)+dd, sel))
    for par in range(2): k('ds_write_b64 v8, %s offset:%d'%(v2(o+2*par),4096+(2*dd+par)*128))
for t in range(4): k('ds_read_b128 %s, v%d offset:%d'%(v4(32+4*t),96+t,4096+1024*t))
a_stores(32,QT,'L_aq')
k('v_mov_b32 v8, 0'); k('v_lshlrev_b32 v10, 2, v1'); k('v_add_u32 v10, s66, v10'); k('ds_write_b32 v10, v8')
UB=16; HB=144; AC=[208,216]; YR=224; KVr=232; CY=248
CAR=4608; ZER=5632; DUM=6144
k('v_mov_b32 v9, 0'); k('v_lshl_add_u32 v10, v1, 3, s66'); k('ds_write_b64 v10, v[8:9] offset:%d'%ZER)
k('s_mov_b64 exec, 3'); k('ds_write_b64 v10, v[8:9] offset:%d'%CAR); k('s_mov_b64 exec, -1')
k('v_and_b32 v10, 3, v1'); k('v_bfe_u32 v11, v1, 2, 2'); k('v_lshrrev_b32 v12, 4, v1')
k('v_lshlrev_b32 v2, 5, v10'); k('v_lshl_add_u32 v2, v12, 6, v2'); k('v_lshl_add_u32 v2, v11, 3, v2'); k('s_add_u32 s71, s66, 32'); k('v_add_u32 v2, s71, v2')
k('v_sub_u32 v3, v10, v11'); k('v_lshlrev_b32 v3, 3, v3'); k('v_lshlrev_b32 v14, 6, v12'); k('v_sub_u32 v3, v3, v14')
k('s_add_u32 s71, s69, 224'); k('v_add_u32 v3, s71, v3')
k('v_lshl_add_u32 v4, v1, 2, s69'); k('v_lshl_add_u32 v5, v1, 2, s66')
k('v_mov_b32 v14, s69'); k('v_mov_b32 v15, s66')
k('v_and_b32 v8, 8, v1'); k('v_cmp_ne_u32 vcc, 0, v8'); k('v_and_b32 v8, 7, v1'); k('v_lshrrev_b32 v9, 3, v1'); k('v_cndmask_b32 v6, v14, v15, vcc')
k('v_lshl_add_u32 v6, v12, 8, v6'); k('v_lshl_add_u32 v6, v8, 5, v6')
k('s_add_u32 s71, s66, %d'%DUM); k('v_lshl_add_u32 v10, v1, 4, s71'); k('s_add_u32 s71, s66, %d'%(CAR+16)); k('v_writelane_b32 v10, s71, 63')
k('s_add_u32 s71, s66, %d'%CAR); k('v_lshl_add_u32 v11, v9, 4, s71'); k('s_add_u32 s71, s66, %d'%ZER); k('v_mov_b32 v14, s71')
k('v_cmp_eq_u32 vcc, 0, v8'); k('s_mov_b32 s71, 81920'); k('v_mul_lo_u32 v9, v9, s71'); k('v_cndmask_b32 v11, v14, v11, vcc')
k('v_lshl_add_u32 v9, v8, 4, v9'); k('s_lshl_b32 s71, s68, 7'); k('v_add_u32 v9, s71, v9')
k('v_lshlrev_b32 v8, 5, v1')
k('s_lshl_b32 s65, s68, 12')
wdf_base()
stamp('Acomp')
k('s_waitcnt vmcnt(0)')
stamp('Adrain')
def rdH(m): return ['ds_read_b64_tr_b16 %s, v3 offset:%d'%(v2(HB+4*m+2*hh),256*m+32*(1-hh)) for hh in range(2)]
def rdU(n,o): return ['ds_read_b64_tr_b16 %s, v2 offset:%d'%(v2(UB+8*n+4*o+2*hh),256*n+128*o+32*hh) for hh in range(2)]
def s1_body():
    k('s_cmp_lg_u32 s6, 0'); k('s_cbranch_scc1 L_tagok2')
    k('v_and_b32 v228, 7, v1'); k('v_lshlrev_b32 v228, 3, v228')
    poll(['buffer_load_dwordx2 v[14:15], v228, s[52:55], 0 offen sc1'],['v_cmp_eq_u32 vcc, 0, v14'])
    tag_from(14)
    k('L_tagok2:')
    island_flag_store('2',12)
    k('s_cmp_eq_u32 s12, 0'); k('s_cbranch_scc1 L_s1slow')
    island_poll('1',12)
    k('v_and_b32 v13, 8, v13'); k('v_cmp_ne_u32 vcc, 0, v13'); k('s_cbranch_vccz L_s1ok')
    k('buffer_wbl2 sc1'); k('s_waitcnt vmcnt(0)'); k('s_mov_b32 s12, 0')
    k('L_s1slow:')
    island_flag_store('1',12,line=384,sc1=True); island_poll('1',12,line=384)
    k('L_s1ok:')
    k('v_mov_b32 v12, %d'%(LCNT+C_MODE)); k('s_add_u32 s76, s12, 1'); k('v_mov_b32 v14, s76'); k('v_mov_b32 v15, s6'); k('ds_write_b64 v12, v[14:15]')
last_arriver(C_A2,'3',224,s1_body)
def mode_wait(tmp):
    lds_wait(C_MODE,tmp); mode_from(tmp+1)
    k('ds_read_b32 v%d, v%d offset:4'%(tmp+1,tmp)); k('s_waitcnt lgkmcnt(0)'); k('v_readfirstlane_b32 s6, v%d'%(tmp+1))
    k('s_lshl_b32 s59, s12, 3'); k('s_xor_b32 s59, s59, 8')
mode_wait(224)
stamp('S1')
k('s_cmp_lt_u32 s67, 80'); k('s_cbranch_scc1 L_conv')
k('s_cmp_lg_u32 s5, 31'); k('s_cbranch_scc1 L_nolead')
k('s_cmp_eq_u32 s3, 0'); k('s_cbranch_scc1 L_lead0')
k('s_cmp_eq_u32 s3, 1'); k('s_cbranch_scc1 L_nolead')
island_poll('2',10,line=128+4096)
k('L_leadp:')
k('s_add_u32 s78, s6, 1'); k('v_mov_b32 v10, s78'); k('v_lshlrev_b32 v11, 9, v1')
k('s_lshl_b32 s77, s4, 2'); k('s_lshl_b32 s76, s3, 5'); k('s_add_u32 s77, s77, s76'); k('s_add_u32 s77, s77, 0x%x'%(FLG+256))
k('s_mov_b64 exec, 0xff'); k('buffer_store_dword v10, v11, %s, s77 offen sc1'%WS); k('s_mov_b64 exec, -1')
k('s_cmp_eq_u32 s3, 0'); k('s_cbranch_scc1 L_pre')
k('L_nolead:')
lds_wait(C_G0,224)
k('s_branch L_wdall2')
k('L_lead0:')
lds_wait(C_G0,224)
wdf_all(7)
island_poll('3',10,27)
k('s_branch L_leadp')

k('L_conv:')
k.reset_counts()
k('s_add_u32 m0, s66, 256'); k('s_add_u32 s70, s65, %d'%KVT)
tU=[k('buffer_load_dwordx4 v7, %s, s70 offen offset:%d sc1 lds'%(WS,1024*t)) for t in range(4)]
tok={}
PRE=4
for m in range(PRE):
    for x in rdH(m): tok['H',m]=k(x)
k('v_lshl_add_u32 v14, v1, 4, s66')
k.need(tU[0])
for n in range(PRE-1):
    for o in range(2):
        for x in rdU(n,o): tok['U',n]=k(x)
k.need(tU[3])
for o in range(2):
    for x in rdU(PRE-1,o): tok['U',PRE-1]=k(x)
for c in range(4): k('ds_read_b128 %s, v14 offset:%d'%(v4(KVr+4*c),256+1024*c))
DP='wave_shr:1 row_mask:0xf bank_mask:0xf bound_ctrl:0'
def post(b):
    E=AC[b&1]; O=E+4
    g=[]
    for r in (2,1,0):
        for A in (E,O): g.append('v_add_f32_dpp v%d, v%d, v%d %s'%(A+r,A+r+1,A+r,DP))
    g+=['ds_write_b32 v4, v%d offset:%d'%(E,256*b),'ds_write_b32 v5, v%d offset:%d'%(O,256*b),
        'ds_write_b128 v10, %s offset:%d'%(v4(E),32*b),'ds_write_b128 v10, %s offset:%d'%(v4(O),32*b+16)]
    return g
def tk_(key,x):
    def f(): tok[key]=k(x)
    return f
def pub_loads(addr,val,tag,which):
    return ['v_and_b32 v%d, 7, v1'%addr,'v_lshlrev_b32 v%d, 3, v%d'%(tag,addr),'v_lshlrev_b32 v%d, 2, v%d'%(addr,addr),
            's_lshl_b32 s71, s4, 9','s_add_u32 s71, s71, 0x%x'%(FLG+256+32*which),
            'buffer_load_dword v%d, v%d, s[52:55], 0 offen sc1'%(tag,tag),'buffer_load_dword v%d, v%d, %s, s71 offen sc1'%(val,addr,WS)]
def pub_chk(val,tag): return ['v_sub_u32 v%d, v%d, v%d'%(val,val,tag),'v_cmp_ne_u32 vcc, 1, v%d'%val]
def gl(): return ['v_lshrrev_b32 v12, 3, v1','v_lshlrev_b32 v253, 3, v12','v_and_b32 v13, 7, v1','v_lshlrev_b32 v13, 4, v13','v_lshl_add_u32 v12, v12, 9, v13','s_mov_b32 s71, 0x%x'%(FLG+128),
                  'buffer_load_dword v252, v253, s[52:55], 0 offen sc1','buffer_load_dwordx4 %s, v12, %s, s71 offen sc1'%(v4(CY),WS)]
def gchk(r,e): return ['v_add_u32 v%d, 1, v%d'%(e,e)]+['v_xor_b32 v%d, v%d, v%d'%(r+i,r+i,e) for i in range(4)]+\
        ['v_or_b32 v%d, v%d, v%d'%(r,r,r+1),'v_or3_b32 v%d, v%d, v%d, v%d'%(r,r,r+2,r+3),'v_cmp_ne_u32 vcc, 0, v%d'%r]
def flag_loads():
    K_(gl())
    k('v_and_b32 v254, 31, v1'); k('v_lshlrev_b32 v254, 2, v254'); k('s_lshl_b32 s83, s4, 9'); k('s_add_u32 s83, s83, 0x%x'%FLG)
    tok['G']=k('buffer_load_dword v255, v254, %s, s83 offen sc1'%WS)
def stats_loads():
    k.need(tok['G'])
    K_(gchk(CY,252))
    k('s_cbranch_vccz L_gqok')
    sv=(k.nv,k.dv)
    poll(['s_sleep 8']+gl(),gchk(CY,252))
    k.nv,k.dv=sv
    k('L_gqok:')
    q2=['v_subrev_u32 v255, s6, v255','v_add_u32 v255, -2, v255','v_cmp_le_u32 vcc, 6, v255']
    k('s_cmp_eq_u32 s12, 0'); k('s_cbranch_scc1 L_q2ok')
    K_(q2); k('s_cbranch_vccz L_q2ok')
    sv=(k.nv,k.dv)
    poll(['buffer_load_dword v255, v254, %s, s83 offen sc1'%WS],q2)
    k.nv,k.dv=sv
    k('L_q2ok:')
    if OPT.get('pause',0)==1: k('v_mov_b32 v12, %d'%(LCNT+C_GO)); k('v_mov_b32 v13, 1'); k('s_mov_b64 exec, 1'); k('ds_add_u32 v12, v13'); k('s_mov_b64 exec, -1')
def chunk_in(c):
    f=[lambda: (k('s_add_u32 s70, s65, %d'%(QT+1024*c)),k('buffer_load_dwordx4 %s, v7, %s, s70 offen sc1'%(a4(64+4*c),WS)))]
    for j in range(4):
        def g(j=j):
            if j%2==0: k('s_mov_b32 s71, %d'%((QR,QNM)[j>>1]+2048*c))
            tok['st',c]=k('buffer_load_dwordx4 %s, v8, %s, s71 offen offset:%d%s'%(a4(16*c+4*j),WS,16*(j&1),' sc1' if OPT.get('stsc',0) else ''))
        f.append(g)
    return f
def chunk_store(c,xq,xy):
    return ['s_mov_b32 s70, %d'%(X1+8*81920*c),'buffer_store_dwordx4 %s, v9, %s, s70 offen sc1'%(v4(xq),WS),
            's_mov_b32 s70, %d'%(YB+8*81920*c),'buffer_store_dwordx4 %s, v9, %s, s70 offen sc1'%(v4(xy),WS)]
def chunk_compute(c):
    KV=KVr+4*c
    f=[S('ds_read_b128 %s, v6 offset:%d'%(v4(YR),1024*c)),S('ds_read_b128 %s, v6 offset:%d'%(v4(YR+4),1024*c+16)),
       tk_(('cy',c),'ds_read_b128 %s, v11 offset:%d'%(v4(CY),128*c))]
    for i in range(4):
        def a0(i=i):
            if i==0: k.need(tok['st',c])
            k('v_accvgpr_read_b32 v12, a%d'%(64+4*c+i))
        f+=[a0,S('v_accvgpr_read_b32 v252, a%d'%(16*c+2*i)),S('v_accvgpr_read_b32 v253, a%d'%(16*c+2*i+1)),
            S('v_accvgpr_read_b32 v254, a%d'%(16*c+8+2*i)),S('v_accvgpr_read_b32 v255, a%d'%(16*c+8+2*i+1)),
            S('v_lshlrev_b32 v14, 16, v%d'%(KV+i)),S('v_and_b32 v15, s64, v%d'%(KV+i))]
        if i==0:
            def c0():
                k.need(tok['cy',c]); k('v_add_f32 v%d, v%d, v%d'%(YR,YR,CY+1))
            f+=[c0,S('v_add_f32 v%d, v%d, v%d'%(YR+1,YR+1,CY+2)),S('v_add_f32 v%d, v%d, v%d'%(YR+2,YR+2,CY+3))]
        y0=YR+2*i
        if c<3:
            f+=[S('v_fmac_f32 v%d, s72, v14'%y0),S('v_fmac_f32 v%d, s72, v15'%(y0+1)),
                S('v_lshlrev_b32 v14, 16, v12'),S('v_and_b32 v15, s64, v12'),
                S('v_fmac_f32 v254, v14, v252'),S('v_fmac_f32 v255, v15, v253'),
                S('v_cvt_pk_bf16_f32 v%d, v%d, v%d'%(KV+i,y0,y0+1)),
                S('v_fmac_f32 v14, v254, v%d'%y0),S('v_fmac_f32 v15, v255, v%d'%(y0+1)),
                S('v_cvt_pk_bf16_f32 v%d, v14, v15'%(CY+i))]
        else:
            f+=[S('v_pk_fma_f32 %s, v[14:15], s[72:73], %s op_sel_hi:[1,0,1]'%(v2(y0),v2(y0))),
                S('v_lshlrev_b32 v14, 16, v12'),S('v_and_b32 v15, s64, v12'),
                S('v_pk_fma_f32 v[252:253], v[14:15], v[252:253], v[254:255]'),
                S('v_cvt_pk_bf16_f32 v%d, v%d, v%d'%(KV+i,y0,y0+1)),
                S('v_pk_fma_f32 v[252:253], v[252:253], %s, v[14:15]'%v2(y0)),
                S('v_cvt_pk_bf16_f32 v%d, v252, v253'%(CY+i))]
    if c<3: f.append(S('ds_write_b128 v6, %s offset:%d'%(v4(CY),1024*c)))
    return f
pend=[]
CC={10:0,12:1,14:2}
for b in range(16):
    postg=[S(x) for x in post(b-1)] if b>0 else []
    rds=[]
    if b+PRE<16:
        rds=[tk_(('H',b+PRE),x) for x in rdH(b+PRE)]+[tk_(('U',b+PRE),x) for o in range(2) for x in rdU(b+PRE,o)]
    fill=rds+postg
    if b==OPT.get('gld',0): fill.append(flag_loads)
    if b==OPT.get('gst',3): fill.append(stats_loads)
    G0=OPT.get('gst',3)
    if b>G0 and b<=G0+8:
        ci=chunk_in((b-G0-1)//2); ci=ci[:3] if (b-G0-1)%2==0 else ci[3:]
        step=max(1,len(fill)//(len(ci)+1))
        for n_,f_ in enumerate(ci): fill.insert(min(len(fill),(n_+1)*step+n_),f_)
    if b in CC:
        cc=chunk_compute(CC[b]); h=(len(cc)*(b+1))//(2*b+3)
        fill+=cc[:h]; pend=cc[h:]
    elif pend: fill+=pend; pend=[]
    order=list(range(1,b))+([0,b] if b>0 else [0])
    mf=[]
    for idx,n in enumerate(order):
        for o in range(2):
            acc=AC[b&1]+4*o
            mf.append((n,b-n,'v_mfma_f32_16x16x32_bf16 %s, %s, %s, %s'%(v4(acc),v4(UB+8*n+4*o),v4(HB+4*(b-n)),'0' if idx==0 else v4(acc))))
    nf=len(fill); nm=len(mf)
    if b in(0,5,9,13): stamp('cv%d'%b)
    lead=0 if rds else min(4,nm-1)
    for i,(n,m,x) in enumerate(mf):
        k.need(tok['U',n],tok['H',m])
        k(x)
        if i>=lead:
            for f in fill[((i-lead)*nf)//(nm-lead):((i-lead+1)*nf)//(nm-lead)]: f()
tb=[k('ds_read_b128 %s, v6 offset:%d'%(v4(UB+4*c),1024*c)) for c in range(3)]
for c in range(3):
    k.need(tb[c]); K_(chunk_store(c,UB+4*c,KVr+4*c))
for x in post(15): k(x)
for f in chunk_compute(3): f()
K_(chunk_store(3,CY,KVr+12))
K_(pub_loads(16,17,18,2))
stamp('conv')
k('s_waitcnt vmcnt(0)')
stamp('convdr')
k('s_cmp_eq_u32 s5, 26'); k('s_cselect_b32 s70, 2, 3')
last_arriver(C_CV,'s70',10,lambda: island_flag_store('3',14))
K_(pub_chk(17,18)); k('s_cbranch_vccz L_wdall2')
poll(pub_loads(16,17,18,2),pub_chk(17,18))
k('L_wdall2:')
wdf_all(7)
k('s_branch L_pre')

k('L_loader:')
k.reset_counts()
for i in range(4): k('v_mov_b32 v%d, 0'%(8+i))
k.srd(60,38,256)
k('s_cmp_lg_u32 s5, 0'); k('s_cbranch_scc1 L_notag')
k('s_memrealtime s[64:65]'); k('s_waitcnt lgkmcnt(0)'); k('s_lshl_b32 s64, s64, 4'); k('s_or_b32 s64, s64, 0x80000000')
k('v_mov_b32 v12, s64'); k('v_mov_b32 v13, s7'); k('s_lshl_b32 s65, s4, 3')
k('s_mov_b64 exec, 1'); k('buffer_store_dwordx2 v[12:13], v8, s[60:63], s65 offen sc1'); k('s_mov_b64 exec, -1')
k('L_notag:')
k.reset_counts()
k('v_mov_b32 v13, %d'%LCNT); k('ds_write_b128 v13, v[8:11]'); k('ds_write_b128 v13, v[8:11] offset:16')
k.srd(44,16,TB)
k('v_lshrrev_b32 v2, 3, v1'); k('v_and_b32 v3, 7, v1'); k('s_lshl_b32 s64, s2, 3'); k('v_add_u32 v4, s64, v2')
k('v_mul_u32_u24 v5, 1280, v4'); k('v_lshl_add_u32 v5, v3, 4, v5')
tq=[k('buffer_load_dwordx4 %s, v5, s[44:47], 0 offen offset:%d'%(v4(16+4*t),128*t)) for t in range(10)]
k('s_waitcnt lgkmcnt(0)'); k('s_barrier')
k.srd(48,34,1536*1280); k.srd(52,30,640*3072); k.srd(56,32,640*3072)
LST=LWU+51200
for t in range(5):
    k('v_add_u32 v6, %d, v1'%(64*t)); k('v_mul_u32_u24 v7, 6554, v6'); k('v_lshrrev_b32 v7, 16, v7')
    k('v_mul_u32_u24 v12, 10, v7'); k('v_sub_u32 v6, v6, v12'); k('v_mul_u32_u24 v7, 1280, v7'); k('v_lshl_add_u32 v%d, v6, 4, v7'%(60+t))
for e in range(2):
    k('s_lshl_b32 s65, s2, 1'); k('s_add_u32 s65, s65, %d'%e); k('s_cmp_ge_u32 s65, 384'); k('s_cselect_b32 s66, 384, 0'); k('s_sub_u32 s65, s65, s66')
    k('s_and_b32 s66, s65, 7'); k('s_lshr_b32 s67, s65, 3')
    k('s_mul_i32 s68, s67, %d'%(32*1280)); k('s_mul_i32 s69, s66, 160'); k('s_add_u32 s%d, s68, s69'%(83+e))
    k('s_mul_i32 s69, s66, 48'); k('s_add_u32 s69, s69, s67'); k('s_mul_i32 s69, s69, 5120'); k('s_add_u32 s%d, s69, 0x%x'%(70+e,WDF))
def wd_tiles():
    for e in range(2):
        for t in range(5):
            k('s_mov_b32 m0, %d'%(LST+5120*e+1024*t)); tw_=k('buffer_load_dwordx4 v%d, s[48:51], s%d offen lds'%(60+t,83+e))
    return tw_
k('v_lshlrev_b32 v7, 4, v1')
for t in range(3):
    k('v_add_u32 v6, %d, v1'%(64*t)); k('v_mul_u32_u24 v8, 10923, v6'); k('v_lshrrev_b32 v8, 16, v8')
    k('v_mul_u32_u24 v9, 6, v8'); k('v_sub_u32 v6, v6, v9'); k('v_mul_u32_u24 v8, 3072, v8'); k('v_lshl_add_u32 v%d, v6, 4, v8'%(66+t)); k('v_subrev_u32 v%d, %d, v%d'%(66+t,1024*t,66+t))
k('s_mul_i32 s72, s5, 96'); k('s_mov_b32 s73, 0'); k('s_mov_b32 s82, 0')
NI=[0]
def w1_issue():
    for gu in range(2):
        k('s_add_u32 m0, s73, %d'%(LWU*gu))
        for t in range(3): k('buffer_load_dwordx4 v%d, s[%d:%d], s72 offen offset:%d lds'%(66+t,52+4*gu,55+4*gu,1024*t))
    k('s_add_u32 s72, s72, %d'%(32*3072)); k('s_add_u32 s73, s73, 3072')
    NI[0]+=1
k('s_mov_b32 s64, 0xffff0000')
for i in range(4): k('v_mov_b32 v%d, 0'%(56+i))
k('v_lshrrev_b32 v69, 3, v1'); k('v_lshlrev_b32 v69, 3, v69')
k('v_bfe_u32 v72, v1, 2, 2'); k('v_lshrrev_b32 v73, 4, v1'); k('v_lshl_add_u32 v72, v73, 2, v72'); k('v_and_b32 v73, 3, v1')
k('v_mul_u32_u24 v71, 96, v72'); k('v_lshl_add_u32 v71, v73, 3, v71')
k('v_mul_u32_u24 v74, 160, v72'); k('v_lshl_add_u32 v74, v73, 3, v74'); k('v_add_u32 v74, %d, v74'%LST)
WT=OPT.get('wt',1)
def wtouch():
    k('v_min_u32 v6, 59, v1'); k('v_lshlrev_b32 v6, 7, v6'); k('s_mul_i32 s65, s2, 7680')
    k('buffer_load_dword v76, v6, s[52:55], s65 offen'); k('buffer_load_dword v77, v6, s[56:59], s65 offen')
if WT==2: wtouch()
k.need(tq[4])
if WT==1: wtouch()
tdbg=k('buffer_load_dword v70, v69, s[60:63], 0 offen sc1')
k.need(tq[9])
stamp('cv0')
W1D=OPT.get('w1d',2)
for i in range(OPT.get('early',2)): w1_issue()
for t in range(10):
    for j in range(4):
        r=16+4*t+j; T=10 if j&1 else 8
        k('v_lshlrev_b32 v%d, 16, v%d'%(T,r)); k('v_and_b32 v%d, s64, v%d'%(T+1,r))
        k('v_pk_add_f32 v[56:57], v[56:57], %s'%v2(T)); k('v_pk_fma_f32 v[58:59], %s, %s, v[58:59]'%(v2(T),v2(T)))
k('v_add_f32 v56, v56, v57'); k('v_add_f32 v58, v58, v59')
for m in ('quad_perm:[1,0,3,2]','quad_perm:[2,3,0,1]','row_half_mirror'):
    k('v_add_f32_dpp v56, v56, v56 %s row_mask:0xf bank_mask:0xf'%m); k('v_add_f32_dpp v58, v58, v58 %s row_mask:0xf bank_mask:0xf'%m)
k('v_mul_f32 v56, 0x%x, v56'%INV); k('v_mul_f32 v58, 0x%x, v58'%INV)
k('v_fma_f32 v58, -v56, v56, v58'); k('v_max_f32 v58, 0, v58'); k('v_add_f32 v58, 0x%x, v58'%EPS); k('v_rsq_f32 v58, v58')
k('v_lshlrev_b32 v6, 2, v2'); k('v_add_u32 v6, %d, v6'%(LCNT+64))
k('v_mul_f32_e64 v56, -v56, v58')
k('ds_write_b32 v6, v58'); k('ds_write_b32 v6, v56 offset:32')
k('v_and_b32 v6, 3, v1'); k('v_lshlrev_b32 v8, 4, v6'); k('v_add_u32 v8, %d, v8'%(LCNT+64))
t=k('ds_read_b128 v[56:59], v8')
k('v_and_b32 v8, 1, v1'); k('v_lshlrev_b32 v8, 4, v8'); k('v_lshrrev_b32 v6, 1, v6'); k('v_lshl_add_u32 v8, v6, 13, v8')
k('s_lshl_b32 s65, s2, 5'); k('s_add_u32 s65, s65, 0x%x'%QR)
k.need(t)
k('s_mov_b64 exec, 15'); k('buffer_store_dwordx4 v[56:59], v8, %s, s65 offen sc1'%WS); k('s_mov_b64 exec, -1')
k('s_mov_b32 s66, 0x3f803f80')
for i in range(24): k('v_mov_b32 v%d, 0'%(80+i))
for i in range(24): k('v_mov_b32 v%d, 0'%(16+i))
k('s_mov_b32 s67, 0')
for i in range(4): k('v_mov_b32 v%d, s66'%(12+i))
for i in range(4): k('v_mov_b32 v%d, -1'%(44+i))
k('s_lshl_b32 s65, s2, 10'); k('s_add_u32 s65, s65, 0x%x'%ST1)
for i in range(OPT.get('mid',1)): w1_issue()
stamp('Acomp')
k('s_waitcnt vmcnt(%d)'%(6*OPT.get('mid',1)))
k('v_cmp_eq_u32 vcc, 0, v70'); k('s_cbranch_vccz L_dbgok')
poll(['buffer_load_dword v70, v69, s[60:63], 0 offen sc1'],['v_cmp_eq_u32 vcc, 0, v70'])
k('L_dbgok:')
k('s_lshl_b32 s76, s4, 3'); k('v_readlane_b32 s6, v70, s76')
k('s_add_u32 s78, s6, 1'); k('v_mov_b32 v8, s78'); k('v_mov_b32 v9, 0'); k('v_add_u32 v75, 1, v8')
flag_addr(128); k('s_add_u32 s85, s77, %d'%(512*8))
k('s_mov_b64 exec, 1'); k('buffer_store_dword v8, v9, %s, s77 offen sc1'%WS); k('s_mov_b64 exec, -1')
stamp('Adrain')
if OPT.get('pause',0)==2:
    k('s_cmp_ge_u32 s5, 27'); k('s_cbranch_scc1 L_nops')
    lds_wait(C_MODE,10)
    k('L_nops:')
if OPT.get('pause',0)==1:
    k('s_mul_i32 s76, s5, 3'); k('s_sub_u32 s76, 80, s76'); k('s_max_i32 s76, s76, 0'); k('s_min_u32 s76, s76, 3')
    k('v_mov_b32 v10, %d'%(LCNT+C_GO)); k('s_mov_b32 s79, 0')
    k('L_go:'); k('ds_read_b32 v11, v10'); k('s_waitcnt lgkmcnt(0)'); k('v_cmp_gt_u32 vcc, s76, v11'); k('s_cbranch_vccz L_god')
    k('s_add_u32 s79, s79, 1'); k('s_lshr_b32 s81, s79, 3'); k('s_cmp_lt_u32 s81, s80'); k('s_cbranch_scc1 L_go'); k('s_mov_b32 s80, 0')
    k('L_god:')
stamp('cv9')
for i in range(W1D-min(1,OPT.get('mid',1))): w1_issue()
PREI=NI[0]
IW=OPT.get('iw',3)
k('L_w1:')
k('s_cmp_ge_u32 s67, %d'%(20-PREI)); k('s_cbranch_scc1 L_w1n')
k('s_waitcnt vmcnt(%d)'%(6*(W1D-1)))
k('L_w1a:')
k('s_cmp_lg_u32 s67, %d'%IW); k('s_cbranch_scc1 L_w1b')
wd_tiles()
k('L_w1b:')
k('s_cmp_lg_u32 s67, %d'%(IW+W1D)); k('s_cbranch_scc1 L_w1c')
k('buffer_store_dwordx4 v[44:47], v7, %s, s65 offen sc1'%WS)
k('s_waitcnt lgkmcnt(0)'); k.nl=k.dl=0
rd={}
for e in range(2):
    for nb in range(5):
        for hh in range(2): rd[e,nb]=k('ds_read_b64_tr_b16 %s, v74 offset:%d'%(v2(104+20*e+4*nb+2*hh),5120*e+2560*hh+32*nb))
for e in range(2):
    for nb in range(5):
        k.need(rd[e,nb])
        if nb==4: k('s_add_u32 s%d, s%d, 4096'%(70+e,70+e))
        k('buffer_store_dwordx4 %s, v7, %s, s%d offen offset:%d sc1'%(v4(104+20*e+4*nb),WS,70+e,1024*(nb%4)))
k('L_w1c:')
k('s_cmp_lg_u32 s67, %d'%(IW+2*W1D)); k('s_cbranch_scc1 L_w1i')
k('s_mov_b64 exec, 1'); k('buffer_store_dword v75, v9, %s, s85 offen sc1'%WS); k('s_mov_b64 exec, -1')
k('L_w1i:')
w1_issue()
assert IW+W1D+PREI-1<=16 and IW+2*W1D<20-PREI+1
k('s_branch L_w1m')
k('L_w1n:'); k('s_cmp_lt_u32 s67, %d'%(21-W1D)); k('s_cbranch_scc1 L_w1o'); k('s_waitcnt vmcnt(0)'); k('L_w1o:'); k('s_waitcnt vmcnt(%d)'%(6*(W1D-1)))
k('L_w1m:')
if OPT['stamps']>1:
    k('s_memtime s[98:99]'); k('s_waitcnt lgkmcnt(0)'); k('s_add_u32 m0, s67, 42'); k('v_writelane_b32 v0, s98, m0')
k('v_add_u32 v4, s82, v71'); k('v_add_u32 v5, %d, v4'%LWU)
k('s_add_u32 s82, s82, 3072')
k('s_waitcnt lgkmcnt(0)')
for b in range(6):
    k('v_mfma_f32_16x16x32_bf16 %s, %s, v[12:15], %s'%(v4(80+4*b),v4(16+4*b),v4(80+4*b)))
    if b>0:
        for hh in range(2): k('ds_read_b64_tr_b16 %s, v%d offset:%d'%(v2(16+4*(b-1)+2*hh),4+((b-1)&1),1536*hh+32*((b-1)>>1)))
k('s_nop 3')
for hh in range(2): k('ds_read_b64_tr_b16 %s, v5 offset:%d'%(v2(36+2*hh),1536*hh+64))
k('s_add_u32 s67, s67, 1'); k('s_cmp_lt_u32 s67, 20'); k('s_cbranch_scc1 L_w1')
k('s_waitcnt lgkmcnt(0)')
for b in range(6): k('v_mfma_f32_16x16x32_bf16 %s, %s, v[12:15], %s'%(v4(80+4*b),v4(16+4*b),v4(80+4*b)))
stamp('conv')
k.srd(52,38,256)
poll(pub_loads(40,41,35,2),pub_chk(41,35))
lds_set(C_G0,'1',44)
k('v_add_u32 v35, 1, v35')
if OPT.get('wdt',0):
    k('v_lshlrev_b32 v27, 7, v1'); k('s_mul_i32 s76, s5, 61440'); k('s_add_u32 s76, s76, 0x%x'%WDF)
    for i in range(8):
        if i==7: k('s_mov_b32 exec_hi, 0')
        k('buffer_load_dword v36, v27, %s, s76 offen sc1'%WS); k('s_add_u32 s76, s76, 8192')
        if i&1: k('s_waitcnt vmcnt(%d)'%OPT.get('wdtd',1))
    k('s_mov_b64 exec, -1')
k('v_lshrrev_b32 v6, 4, v1'); k('v_lshlrev_b32 v6, 4, v6'); k('s_lshl_b32 s65, s2, 9'); k('s_add_u32 s65, s65, 0x%x'%CS)
k('s_mov_b32 s66, 0x00010001'); k('s_nop 7'); k('s_mov_b32 exec_lo, s66'); k('s_mov_b32 exec_hi, s66')
for b in range(6): k('buffer_store_dwordx4 %s, v6, %s, s65 offen offset:%d'%(v4(80+4*b),WS,64*b))
k('s_mov_b64 exec, -1')
mode_wait(8)
if OPT.get('pt',0):
    k('s_cmp_lg_u32 s12, 1'); k('s_cbranch_scc1 L_nopt')
    K_(['v_lshrrev_b32 v27, 4, v1','s_mov_b32 s76, 49152','v_mul_lo_u32 v27, v27, s76','v_and_b32 v28, 7, v1','v_lshl_add_u32 v27, v28, 7, v27',
       'v_bfe_u32 v28, v1, 3, 1','s_and_b32 s76, s5, 1','s_lshl_b32 s76, s76, 1','s_sub_u32 s76, s76, 1','v_mul_lo_u32 v28, v28, s76','v_lshl_add_u32 v27, v28, 10, v27',
       's_lshr_b32 s76, s5, 1','s_mul_i32 s76, s76, 3072','s_mul_i32 s77, s4, %d'%(16*49152),'s_add_u32 s76, s76, s77','v_add_u32 v27, 1024, v27'])
    for H in (H1,H2):
        for w in range(4):
            k('s_add_u32 s77, s76, %d'%(H+4*49152*w)); k('buffer_load_dword v28, v27, %s, s77 offen sc1'%WS)
    k('s_lshl_b32 s76, s4, 2'); k('s_lshr_b32 s77, s5, 3'); k('s_add_u32 s76, s76, s77'); k('s_mul_i32 s76, s76, 81920')
    k('s_and_b32 s77, s5, 7'); k('s_mul_i32 s77, s77, 10240'); k('s_add_u32 s76, s76, s77'); k('s_add_u32 s76, s76, %d'%X3)
    k('v_lshlrev_b32 v27, 7, v1'); k('buffer_load_dword v28, v27, %s, s76 offen sc1'%WS)
    k('v_and_b32 v27, 15, v1'); k('v_lshlrev_b32 v27, 7, v27'); k('s_add_u32 s76, s76, 8192'); k('buffer_load_dword v28, v27, %s, s76 offen sc1'%WS)
    k('L_nopt:')
wdf_base()
stamp('convdr')
k('s_branch L_wdall2')

k('L_pre:')
k.reset_counts()
k('s_cmp_eq_u32 s13, 0'); k('s_cbranch_scc1 L_pre0')
k('s_waitcnt vmcnt(0) lgkmcnt(0)'); k('s_barrier')
k('s_cmp_lg_u32 s3, 0'); k('s_cbranch_scc1 L_pre0')
island_flag_store('5',32)
k('L_pre0:')
ACC=32; XS=[128,144]; WF=160; SA=184; ONE=188; STL=192; CSR=224
k('s_lshl_b32 s64, s3, 13'); k('s_add_u32 s64, s64, %d'%LR)
k('v_lshrrev_b32 v12, 3, v1'); k('v_bfe_u32 v13, v12, 1, 2'); k('v_lshlrev_b32 v13, 1, v13'); k('v_and_b32 v14, 7, v1'); k('v_xor_b32 v13, v14, v13')
k('v_lshlrev_b32 v13, 4, v13'); k('v_lshl_add_u32 v2, v12, 7, v13')
k('v_xor_b32 v13, v14, v12'); k('v_lshlrev_b32 v13, 4, v13'); k('v_lshl_add_u32 v3, v12, 7, v13')
k('s_lshl_b32 s65, s4, 2'); k('s_add_u32 s65, s65, s3'); k('s_mul_i32 s65, s65, 81920'); k('s_add_u32 s65, s65, s14')
k('s_lshr_b32 s66, s5, 3')
for i in range(4):
    k('s_add_u32 s72, s66, %d'%i); k('s_and_b32 s72, s72, 3'); k('s_mul_i32 s72, s72, 20480'); k('s_add_u32 s%d, s72, s65'%(67+i))
k('v_bfe_u32 v10, v1, 2, 2'); k('v_lshrrev_b32 v11, 4, v1'); k('v_lshl_add_u32 v10, v11, 2, v10'); k('v_and_b32 v11, 3, v1')
k('v_mul_u32_u24 v8, 96, v10'); k('v_lshl_add_u32 v8, v11, 3, v8')
k('s_and_b32 s72, s5, 1'); k('s_lshl_b32 s73, s72, 5'); k('s_xor_b32 s72, s72, 1'); k('s_lshl_b32 s72, s72, 6')
k('v_add_u32 v9, s72, v8'); k('v_add_u32 v8, s73, v8')
for i in range(4):
    k('s_add_u32 s72, s66, %d'%i); k('s_and_b32 s72, s72, 3'); k('s_mul_i32 s%d, s72, 15360'%(82+i))
k('v_add_u32 v22, %d, v8'%LWU); k('v_add_u32 v23, %d, v9'%LWU)
def wbases(it):
    r=(16,28)[it&1]
    return ['v_add_u32 v%d, s%d, v%d'%(r+j,82+it,(8,9,22,23)[j]) for j in range(4)]
K_(['s_lshl_b32 s74, s4, 4','s_lshl_b32 s75, s3, 2','s_add_u32 s74, s74, s75','s_mul_i32 s73, s74, 49152','s_lshl_b32 s74, s74, 9','s_add_u32 s74, s74, s42',
    's_lshr_b32 s72, s5, 1','s_mul_i32 s72, s72, 3072','s_add_u32 s73, s73, s72','s_add_u32 s73, s73, s15','s_and_b32 s75, s5, 3'])
for q in range(4):
    K_(['s_xor_b32 s76, s75, %d'%q,'s_lshl_b32 s72, s76, 9','s_add_u32 s%d, s72, s74'%(45+q),'s_mul_i32 s76, s76, 49152','s_add_u32 s%d, s76, s73'%(52+q)])
K_(['s_bfe_u32 s77, s5, 0x10002','s_lshl_b32 s77, s77, 4','s_add_u32 s44, s45, s77','s_lshl_b32 s77, s66, 2','s_add_u32 s44, s44, s77',
    'v_and_b32 v24, 15, v1','v_lshlrev_b32 v24, 5, v24','v_lshrrev_b32 v26, 4, v1','v_lshlrev_b32 v26, 4, v26',
    's_lshl_b32 s76, s2, 9','s_add_u32 s76, s76, 0x%x'%CS,'s_and_b32 s77, s5, 1','s_lshl_b32 s56, s77, 11','s_lshl_b32 s78, s77, 7','s_add_u32 s49, s78, s76',
    's_lshl_b32 s78, s77, 3','v_lshl_add_u32 v21, v1, 4, s78','v_lshlrev_b32 v20, 4, v1',
    's_xor_b32 s77, s77, 1','s_lshl_b32 s77, s77, 8','s_add_u32 s50, s77, s76',
    's_lshl_b32 s76, s4, 2','s_add_u32 s76, s76, s66','s_mul_i32 s76, s76, 81920','s_and_b32 s77, s5, 7','s_mul_i32 s77, s77, 10240','s_add_u32 s43, s76, s77',
    's_bitcmp1_b32 s3, 1','s_cselect_b32 s76, 0x%x, s14'%YB,'s_add_u32 s76, s76, s43','s_and_b32 s77, s3, 1','s_mul_i32 s77, s77, 5120','s_add_u32 s51, s76, s77',
    's_mov_b32 s86, 0x22222222','s_mov_b32 s87, s86','s_mov_b32 s88, 0x44444444','s_mov_b32 s89, s88','s_mov_b32 s90, 0x88888888','s_mov_b32 s91, s90'])
K_(['v_lshrrev_b32 v27, 4, v1','s_mov_b32 s76, 49152','v_mul_lo_u32 v27, v27, s76','v_and_b32 v12, 7, v1','v_lshl_add_u32 v27, v12, 7, v27',
    'v_bfe_u32 v12, v1, 3, 1','s_sub_u32 s76, s56, 1024','v_mul_lo_u32 v12, v12, s76','v_add3_u32 v27, v27, v12, s73'])
k('v_bfe_u32 v12, v10, 1, 2'); k('s_and_b32 s72, s5, 3'); k('v_xor_b32 v12, s72, v12'); k('v_lshlrev_b32 v12, 1, v12')
k('v_lshrrev_b32 v13, 1, v11'); k('v_and_b32 v14, 1, v11'); k('v_lshlrev_b32 v14, 3, v14'); k('v_lshl_add_u32 v14, v10, 7, v14'); k('v_add_u32 v14, s64, v14')
for q in range(4):
    k('v_add_u32 v15, %d, v13'%(2*q)); k('v_xor_b32 v15, v15, v12'); k('v_lshl_add_u32 v%d, v15, 4, v14'%(4+q))
k('s_mov_b32 s72, 0x3f803f80')
for i in range(4): k('v_mov_b32 v%d, s72'%(ONE+i))
def dma_pre(ks): return ['s_add_u32 m0, s64, %d'%((ks&1)*4096),'s_add_u32 s71, s%d, %d'%(67+ks//5,(ks%5)*4096)]
def dma(t): return 'buffer_load_dwordx4 v2, %s, s71 offen offset:%d%s lds'%(WS,1024*t,LP)
K_(wbases(0)); K_(dma_pre(0))
k('s_cmp_eq_u32 s13, 1'); k('s_cbranch_scc1 L_s6')
k('s_cmp_lg_u32 s3, 3'); k('s_cbranch_scc1 L_s2b')
k('v_and_b32 v32, 7, v1'); k('v_lshlrev_b32 v32, 2, v32'); k('s_lshl_b32 s77, s4, 9'); k('s_add_u32 s77, s77, 0x%x'%(FLG+256))
poll(['buffer_load_dword v33, v32, %s, s77 offen sc1'%WS], ['v_cmp_ne_u32 vcc, v35, v33'])
k('s_branch L_s2b')
k('L_s6:')
k('s_cmp_lg_u32 s3, 0'); k('s_cbranch_scc1 L_s2b')
island_poll('5',32)
k('L_s2b:')
k('s_waitcnt vmcnt(0) lgkmcnt(0)')
k('s_barrier')
stamp('G1in',True)
if OPT['stop']<=1: k('s_branch L_fin')

T={}
for t in range(4): T['d',0]=k(dma(t))
K_(dma_pre(1))
for t in range(4): T['d',1]=k(dma(t))
def wr(ks,b):
    p=b>>1; gu=b&1
    base=(16,28)[(ks//5)&1]+2*gu+(1 if p==2 else 0); off=(ks%5)*3072+(32*p if p<2 else 0)
    return ['ds_read_b64_tr_b16 %s, v%d offset:%d'%(v2(WF+4*b+2*hh),base,off+1536*hh) for hh in range(2)]
for b in range(5):
    for x in wr(0,b): T['w',0,b]=k(x)
K_(dma_pre(2))
def xr(ks,q): return ['ds_read_b64_tr_b16 %s, v%d offset:%d'%(v2(XS[ks&1]+4*q+2*hh),4+q,(ks&1)*4096+2048*hh) for hh in range(2)]
k.need(T['d',0])
for q in range(4):
    for x in xr(0,q): T['x',0]=k(x)
stamp('G1pro',True)
def st_loads():
    o=[]
    for q in range(4):
        o+=['buffer_load_dwordx4 %s, v24, %s, s%d offen sc1'%(v4(STL+8*q),WS,45+q),'buffer_load_dwordx4 %s, v24, %s, s%d offen offset:16 sc1'%(v4(STL+8*q+4),WS,45+q)]
    return o
def publish_stats():
    o=[S('v_cndmask_b32 v25, v%d, v%d, s[%d:%d]'%(SA if r==1 else 25,SA+r,84+2*r,85+2*r)) for r in (1,2,3)]
    def st():
        k('s_mov_b32 exec_lo, 0x00f0000f'); k('s_mov_b32 exec_hi, 0xf0000f00')
        hstore(['buffer_store_dword v25, v24, %s, s44 offen'%WS])
        k('s_mov_b64 exec, -1')
    return o+[st]
cs_l=['buffer_load_dwordx4 %s, v26, %s, %s offen offset:%d'%(v4(CSR+4*b),WS,'s49' if b<4 else 's50',64*(b%4)) for b in range(6)]
chk=['v_max3_u32 v25, v%d, v%d, v%d'%(STL,STL+1,STL+2)]
for i in range(3,31,2): chk.append('v_max3_u32 v25, v25, v%d, v%d'%(STL+i,STL+i+1))
chk+=['v_max_u32 v25, v25, v%d'%(STL+31),'v_cmp_eq_u32 vcc, -1, v25']
CA=-2*0.7978845608028654*1.4426950408889634
PQs=[184,188,248,252]
def st_check():
    k(chk[-1]); k('s_cbranch_vccz L_stok')
    sv=(k.nv,k.dv); poll(st_loads(),chk); k.nv,k.dv=sv
    k('L_stok:')
stc=[]
for j in (1,2,3):
    for q in range(4): stc+=['v_add_f32 v%d, v%d, v%d'%(STL+8*q,STL+8*q,STL+8*q+j),'v_add_f32 v%d, v%d, v%d'%(STL+8*q+4,STL+8*q+4,STL+8*q+4+j)]
for q in range(4): stc+=['v_mul_f32 v%d, 0x%x, v%d'%(PQs[q],INV^0x80000000,STL+8*q+4),'v_mul_f32 v%d, 0x%x, v%d'%(STL+8*q,INV,STL+8*q)]
for q in range(4): stc+=['v_fma_f32 v%d, -v%d, v%d, v%d'%(STL+8*q,PQs[q],PQs[q],STL+8*q)]
for q in range(4): stc+=['v_max_f32 v%d, 0, v%d'%(STL+8*q,STL+8*q)]
for q in range(4): stc+=['v_add_f32 v%d, 0x%x, v%d'%(PQs[q]+1,EPS,STL+8*q)]
for q in range(4): stc+=['v_rsq_f32 v%d, v%d'%(STL+8*q,PQs[q]+1)]
for q in range(4): stc+=['v_mul_f32 v%d, 0x%x, v%d'%(PQs[q]+2,fb(CA),STL+8*q),'v_mul_f32 v%d, v%d, v%d'%(STL+8*q+1,STL+8*q,STL+8*q)]
for q in range(4): stc+=['v_mul_f32 v%d, 0x%x, v%d'%(STL+8*q+1,fb(0.044715),STL+8*q+1)]
for q in range(4): stc+=['v_mul_f32 v%d, v%d, v%d'%(PQs[q]+3,PQs[q]+2,STL+8*q+1)]
late=[S(x) for x in chk[:-1]]+[st_check]+[S(x) for x in stc]
def touch():
    l=k.lab('Ltc'); k('s_cmp_lg_u32 s12, 1'); k('s_cbranch_scc1 %s'%l); k('s_cmp_lg_u32 s13, 0'); k('s_cbranch_scc1 %s'%l)
    nv=k.nv
    k('s_mov_b32 s76, 1024'); k('buffer_load_dword v19, v27, %s, s76 offen sc1'%WS)
    k('v_min_u32 v8, 19, v1'); k('s_mul_i32 s76, s3, 2560'); k('v_lshlrev_b32 v8, 7, v8'); k('s_add_u32 s76, s76, s43'); k('s_add_u32 s76, s76, %d'%X3)
    k('buffer_load_dword v19, v8, %s, s76 offen sc1'%WS)
    k.nv=nv
    k(l+':')
extra={5:publish_stats(),10:[S(x) for x in cs_l],13:[S(x) for x in st_loads()[:4]],14:[S(x) for x in st_loads()[4:]]}
for ks in range(20):
    gaps=[[] for _ in range(24)]
    def put(g,key,x): gaps[g].append((key,x))
    for hh in range(2): put(hh,('w',ks,5),wr(ks,5)[hh])
    if ks+2<20:
        for t,g in enumerate((2,3,6,7)): put(g,('d',ks+2),dma(t))
    if ks+3<20:
        for x,g in zip(dma_pre(ks+3),(22,23)): put(g,None,x)
    if ks+1<20:
        for b in range(5):
            for hh in range(2): put(4*b+4+hh,('w',ks+1,b),wr(ks+1,b)[hh])
        for i in range(8): put(10+i,('x',ks+1,i),xr(ks+1,i>>1)[i&1])
    if ks==18:
        put(22,None,'s_mov_b32 m0, s64')
        if OPT.get('touch',1): put(11,'f',touch)
    if ks==19:
        for t in range(4): put(2+2*t,None,'buffer_load_dwordx4 v3, %s, s51 offen offset:%d sc1 lds'%(WS,1024*t))
        put(9,None,'s_add_u32 m0, s64, 4096'); put(10,None,'s_add_u32 s76, s51, 4096'); put(11,None,'buffer_load_dwordx4 v3, %s, s76 offen sc1 lds'%WS)
    if ks>=16:
        slots={16:[18,19,20,21,22,23],17:[0,1,4,5,8,9,18,18,19,19,20,21,22,22,23,23],18:[0,1,2,2,3,3,4,5,6,6,7,7,8,9,18,18,19,19,20,21,22,23,23],
               19:[g for g in range(24) for _ in range(2)]}[ks]
        for g in slots:
            if late: put(g,'f',late.pop(0))
    ex=list(extra.get(ks,[]))
    if ks%5==2 and ks<15: ex+=[S(x) for x in wbases(ks//5+1)]
    free=[18,19,22,23,4,5,8,9,20,21,2,3,6,7,0,1]
    for g,f in zip(sorted(free[:max(len(ex),1)]),ex): put(g,'f',f)
    i=0
    for b in range(6):
        for q in (range(4) if (b&1)==0 else range(3,-1,-1)):
            if i==0: k.need(T['x',ks],T['w',ks,0],T['w',ks,3])
            if i==16: k.need(T['w',ks,4],T['w',ks,5])
            acc=ACC+4*(6*q+b)
            k('v_mfma_f32_16x16x32_bf16 %s, %s, %s, %s'%(v4(acc),v4(WF+4*b),v4(XS[ks&1]+4*q),'0' if ks==0 else v4(acc)))
            if ks<5 and i==19:
                l1=k.lab('Lsq'); l2=k.lab('Lsd'); cc='0' if ks==0 else v4(SA); X0=XS[ks&1]
                k('s_bitcmp1_b32 s5, 2'); k('s_cbranch_scc0 %s'%l1)
                k('v_mfma_f32_16x16x32_bf16 %s, %s, %s, %s'%(v4(SA),v4(ONE),v4(X0),cc)); k('s_branch %s'%l2)
                k(l1+':'); k('v_mfma_f32_16x16x32_bf16 %s, %s, %s, %s'%(v4(SA),v4(X0),v4(X0),cc)); k(l2+':')
            for key,x in gaps[i]:
                if key=='f': x(); continue
                if key and key[0]=='x' and key[2]==0: k.need(T['d',ks+1])
                t=k(x)
                if key and t: T[key[:2] if key[0]=='x' else key]=t
            i+=1
    if ks==4: stamp('G1i0',True)
stamp('G1',True)
assert not late
k('v_mov_b32 v2, v20')
TMP=144
for q in range(4):
    p=PQs[q]; o=STL+8*(q&1)
    items=[(pp,h2) for pp in range(3) for h2 in range(2)]
    G=lambda pp,h2: ACC+4*(6*q+2*pp)+2*h2
    U=lambda pp,h2: ACC+4*(6*q+2*pp+1)+2*h2
    t=lambda i: TMP+2*i
    for i,(pp,h2) in enumerate(items): k('v_pk_fma_f32 %s, %s, %s, %s op_sel_hi:[0,1,1]'%(v2(G(pp,h2)),v2(p),v2(CSR+8*pp+2*h2),v2(G(pp,h2))))
    for i,(pp,h2) in enumerate(items): k('v_pk_mul_f32 %s, %s, %s'%(v2(t(i)),v2(G(pp,h2)),v2(G(pp,h2))))
    for i,(pp,h2) in enumerate(items): k('v_pk_fma_f32 %s, %s, %s, %s op_sel:[0,1,0] op_sel_hi:[1,1,0]'%(v2(t(i)),v2(t(i)),v2(p+2),v2(p+2)))
    for i,(pp,h2) in enumerate(items): k('v_pk_mul_f32 %s, %s, %s'%(v2(t(i)),v2(t(i)),v2(G(pp,h2))))
    for i,(pp,h2) in enumerate(items):
        k('v_exp_f32 v%d, v%d'%(t(i),t(i))); k('v_exp_f32 v%d, v%d'%(t(i)+1,t(i)+1))
        k('v_pk_fma_f32 %s, %s, %s, %s op_sel_hi:[0,1,1]'%(v2(U(pp,h2)),v2(p),v2(CSR+8*pp+4+2*h2),v2(U(pp,h2))))
    for i,(pp,h2) in enumerate(items): k('v_pk_fma_f32 %s, %s, %s, %s op_sel:[0,1,1] op_sel_hi:[1,1,1]'%(v2(t(i)),v2(t(i)),v2(p),v2(p)))
    for i,(pp,h2) in enumerate(items):
        k('v_rcp_f32 v%d, v%d'%(t(i),t(i))); k('v_rcp_f32 v%d, v%d'%(t(i)+1,t(i)+1))
        k('v_pk_mul_f32 %s, %s, %s'%(v2(G(pp,h2)),v2(G(pp,h2)),v2(U(pp,h2))))
    for i,(pp,h2) in enumerate(items): k('v_pk_mul_f32 %s, %s, %s'%(v2(G(pp,h2)),v2(G(pp,h2)),v2(t(i))))
    for i,(pp,h2) in enumerate(items): k('v_cvt_pk_bf16_f32 v%d, v%d, v%d'%(o+i,G(pp,h2),G(pp,h2)+1))
    k('s_add_u32 s78, s%d, s56'%(52+q))
    hstore(['buffer_store_dwordx4 %s, v2, %s, s78 offen'%(v4(o),WS),'buffer_store_dwordx2 %s, v21, %s, s%d offen offset:1024'%(v2(o+4),WS,52+q)])
stamp('G1epi',True)
A2=16; HF=96; NFR=24; P1=192; P2=212; RES=232; YY=242; P3=192
k('s_lshl_b32 s64, s4, 2'); k('s_lshr_b32 s65, s5, 3'); k('s_add_u32 s64, s64, s65')
k('s_and_b32 s69, s5, 7')
k('s_mul_i32 s66, s64, %d'%(4*49152)); k('s_mul_i32 s67, s3, 12288'); k('s_add_u32 s66, s66, s67'); k('s_add_u32 s66, s66, s15')
for sl in range(3):
    k('s_add_u32 s71, s3, %d'%(sl+1)); k('s_and_b32 s71, s71, 3'); k('s_mul_i32 s%d, s71, 49152'%(60+sl)); k('s_add_u32 s%d, s%d, s66'%(60+sl,60+sl))
    k('s_mul_i32 s71, s71, 5120'); k('s_add_u32 s71, s71, %d'%(LR+(20480 if sl==1 else 0))); k('v_add_u32 v%d, s71, v2'%(4+sl))
k('s_mul_i32 s63, s3, 49152'); k('s_add_u32 s63, s63, s66')
k('s_mul_i32 s71, s3, 5120'); k('s_add_u32 s71, s71, %d'%LR); k('v_add_u32 v7, s71, v2')
k('v_and_b32 v8, 15, v1'); k('v_lshrrev_b32 v9, 4, v1')
k('v_lshrrev_b32 v10, 1, v9'); k('s_lshl_b32 s71, s3, 1'); k('v_add_u32 v10, s71, v10'); k('v_and_b32 v11, 7, v8'); k('v_xor_b32 v10, v10, v11')
k('v_lshlrev_b32 v10, 4, v10'); k('v_and_b32 v11, 1, v9'); k('v_lshl_add_u32 v10, v11, 3, v10'); k('v_lshl_add_u32 v10, v8, 7, v10'); k('v_add_u32 v14, %d, v10'%LR)
k('v_bfe_u32 v11, v8, 3, 1'); k('v_mul_u32_u24 v11, 3072, v11'); k('v_add_u32 v15, v14, v11')
k('s_mov_b32 s71, 0xffff0000')
k('s_waitcnt vmcnt(0) lgkmcnt(0)'); k('s_barrier')
for which,dst in ((0,RES),(1,YY)):
    for nb in range(5):
        k('ds_read_b64 %s, v%d offset:%d'%(v2(dst+2*nb),15 if nb==2 else 14,16384*which+2048*nb+(3072 if nb>2 else 0)))
k('s_cmp_lg_u32 s3, 0'); k('s_cbranch_scc1 L_s4b')
k('s_lshl_b32 s68, s13, 1'); k('s_add_u32 s68, s68, 4')
island_flag_store('s68',16); island_poll('s68',16)
k('L_s4b:')

k('s_waitcnt lgkmcnt(0)'); k('s_barrier')
stamp('S4',True)
if OPT['stop']<=2: k('s_branch L_fin')

k.reset_counts()
LOOK=OPT.get('look',8)
TH={}
def hload(n):
    sl,i=divmod(n,12)
    if i%4==0 and i: k('s_add_u32 s%d, s%d, 4096'%(60+sl,60+sl))
    TH[n]=k('buffer_load_dwordx4 %s, v2, %s, s%d offen offset:%d sc1'%(v4(HF+4*(n%NFR)),WS,60+sl,1024*(i%4)))
for n in range(LOOK): hload(n)
def run(sl,fill,cin=None,start=2):
    i=0
    for kap in range(12):
        n=12*sl+kap
        for nb in range(5):
            acc=A2+20*sl+4*nb
            c=v4(acc) if kap else ('0' if cin is None else v4(cin+4*nb))
            k.need(TH[n])
            k('v_mfma_f32_16x16x32_bf16 %s, %s, %s, %s'%(v4(acc),v4(HF+4*(n%NFR)),a4(4*(5*kap+nb)),c))
            if nb==0 and n+LOOK<48: hload(n+LOOK)
            elif i>=start and fill: fill.pop(0)()
            i+=1
    for f in fill: f()
def wr_acc(sl): return [S('ds_write_b128 v%d, %s offset:%d'%(4+sl,v4(A2+20*sl+4*nb),1024*nb)) for nb in range(5)]
def rd_part(dst,off,key):
    o=[]
    for nb in range(5):
        def f(nb=nb): TH[key]=k('ds_read_b128 %s, v7 offset:%d'%(v4(dst+4*nb),off+1024*nb))
        o.append(f)
    return o
nop=lambda: None
def spaced(fs,n):
    o=[]
    for f in fs: o+=[f]+[nop]*n
    return o
stamp('G2pro',True)
run(0,[])
stamp('G2s0',True)
run(1,spaced(wr_acc(0),3),start=5)
k('s_waitcnt lgkmcnt(0)'); k('s_barrier')
stamp('G2s1',True)
f=[]
for nb in range(5):
    for h2 in range(2):
        r=RES+2*nb+h2; p=P1+4*nb+2*h2
        def f1(p=p):
            k.need(TH['p1']); k('v_add_f32 v%d, v%d, v10'%(p,p))
        f+=[S('v_lshlrev_b32 v10, 16, v%d'%r),S('v_and_b32 v11, s71, v%d'%r),f1,S('v_add_f32 v%d, v%d, v11'%(p+1,p+1))]
w=wr_acc(1); g=rd_part(P1,0,'p1')
for i in range(5):
    g+=[w[i]]+[(lambda a=f[8*i+2*j],b=f[8*i+2*j+1]: (a(),b())) for j in range(4)]
run(2,g,start=0)
k('s_waitcnt lgkmcnt(0)'); k('s_barrier')
stamp('G2s2',True)
def b3(): k('s_waitcnt lgkmcnt(0)'); k('s_barrier')
P3=96
f=rd_part(P2,20480,'p2')+spaced(wr_acc(2),2)+[nop]*4+[b3]+rd_part(P3,0,'p3')+[nop]*3
for j in range(10):
    def f2(j=j):
        k.need(TH['p3']); k('v_add_f32 v%d, v%d, v%d'%(P2+2*j,P2+2*j,P3+2*j)); k('v_add_f32 v%d, v%d, v%d'%(P2+2*j+1,P2+2*j+1,P3+2*j+1))
    f.append(f2)
run(3,f,cin=P1,start=0)
V=A2+60
for nb in range(5):
    for h2 in range(2): k('v_pk_add_f32 %s, %s, %s'%(v2(V+4*nb+2*h2),v2(V+4*nb+2*h2),v2(P2+4*nb+2*h2)))
stamp('G2',True)
k('s_cmp_eq_u32 s13, 1'); k('s_cbranch_scc1 L_out')
SS=16
for h2 in range(2):
    k('v_pk_add_f32 %s, %s, %s'%(v2(SS+2*h2),v2(V+2*h2),v2(V+4+2*h2))); k('v_pk_mul_f32 %s, %s, %s'%(v2(SS+4+2*h2),v2(V+2*h2),v2(V+2*h2)))
for nb in range(1,5):
    for h2 in range(2):
        if nb>1: k('v_pk_add_f32 %s, %s, %s'%(v2(SS+2*h2),v2(SS+2*h2),v2(V+4*nb+2*h2)))
        k('v_pk_fma_f32 %s, %s, %s, %s'%(v2(SS+4+2*h2),v2(V+4*nb+2*h2),v2(V+4*nb+2*h2),v2(SS+4+2*h2)))
for sh in (8,4,2,1):
    for i in range(8): k('v_add_f32_dpp v%d, v%d, v%d row_ror:%d row_mask:0xf bank_mask:0xf'%(SS+i,SS+i,SS+i,sh))
k('s_lshl_b32 s70, s64, 2'); k('s_add_u32 s70, s70, s3'); k('s_lshl_b32 s70, s70, 10'); k('s_add_u32 s70, s70, 0x%x'%EX)
k('s_lshl_b32 s72, s69, 5'); k('s_add_u32 s72, s72, s70'); k('v_lshlrev_b32 v10, 8, v9')
k('s_mov_b32 s73, 0x00010001'); k('s_mov_b32 exec_lo, s73'); k('s_mov_b32 exec_hi, s73')
hstore(['buffer_store_dwordx4 %s, v10, %s, s72 offen'%(v4(SS),WS),'buffer_store_dwordx4 %s, v10, %s, s72 offen offset:16'%(v4(SS+4),WS)])
k('s_mov_b64 exec, -1')
k('v_and_b32 v11, 7, v1'); k('v_lshl_add_u32 v10, v11, 5, v10'); k('v_bfe_u32 v11, v1, 3, 1'); k('v_lshl_add_u32 v10, v11, 4, v10')
YF=32
for nb in range(5):
    for h2 in range(2):
        k('v_lshlrev_b32 v%d, 16, v%d'%(YF+4*nb+2*h2,YY+2*nb+h2)); k('v_and_b32 v%d, s71, v%d'%(YF+4*nb+2*h2+1,YY+2*nb+h2))
poll(['buffer_load_dwordx4 v[24:27], v10, %s, s70 offen sc1'%WS],['v_max_u32 v12, v24, v25','v_max3_u32 v12, v12, v26, v27','v_cmp_eq_u32 vcc, -1, v12'])
for m in ('quad_perm:[1,0,3,2]','quad_perm:[2,3,0,1]','row_half_mirror'):
    for i in range(4): k('v_add_f32_dpp v%d, v%d, v%d %s row_mask:0xf bank_mask:0xf'%(24+i,24+i,24+i,m))
k('v_cmp_eq_u32 vcc, 0, v11')
for i in range(4): k('v_mov_b32_dpp v%d, v%d row_ror:8 row_mask:0xf bank_mask:0xf'%(28+i,24+i))
for i in range(4): k('v_cndmask_b32 v%d, v%d, v%d, vcc'%(SS+i,28+i,24+i))
for i in range(4): k('v_cndmask_b32 v%d, v%d, v%d, vcc'%(SS+4+i,24+i,28+i))
k('s_mov_b32 s72, 0x%x'%INV); k('s_mov_b32 s73, s72')
for i in range(4): k('v_pk_mul_f32 %s, %s, s[72:73]'%(v2(SS+2*i),v2(SS+2*i)))
for i in range(4): k('v_fma_f32 v%d, -v%d, v%d, v%d'%(SS+4+i,SS+i,SS+i,SS+4+i))
for i in range(4): k('v_max_f32 v%d, 0, v%d'%(SS+4+i,SS+4+i))
for i in range(4): k('v_add_f32 v%d, 0x%x, v%d'%(SS+4+i,EPS,SS+4+i))
for i in range(4): k('v_rsq_f32 v%d, v%d'%(SS+4+i,SS+4+i))
for i in range(4): k('v_mul_f32_e64 v%d, -v%d, v%d'%(SS+i,SS+i,SS+4+i))
for nb in range(5):
    for h2 in range(2): k('v_pk_fma_f32 %s, %s, %s, %s'%(v2(52+4*nb+2*h2),v2(V+4*nb+2*h2),v2(SS+4+2*h2),v2(SS+2*h2)))
for nb in range(5):
    for h2 in range(2): k('v_pk_fma_f32 %s, %s, %s, %s'%(v2(V+4*nb+2*h2),v2(52+4*nb+2*h2),v2(YF+4*nb+2*h2),v2(V+4*nb+2*h2)))
    for h2 in range(2): k('v_cvt_pk_bf16_f32 v%d, v%d, v%d'%(52+2*nb+h2,V+4*nb+2*h2,V+4*nb+2*h2+1))
    k('ds_write_b64 v14, %s offset:%d'%(v2(52+2*nb),20480+2048*nb))
k('s_lshl_b32 s70, s3, 10'); k('s_add_u32 s72, s70, %d'%(LR+20480)); k('v_add_u32 v10, s72, v2')
k('s_add_u32 s70, s70, s43'); k('s_add_u32 s70, s70, %d'%X3); k('s_add_u32 s72, s70, 4096'); k('s_add_u32 s73, s70, 8192')
k('s_waitcnt lgkmcnt(0)'); k('s_barrier')
for t in range(3): k('ds_read_b128 %s, v10 offset:%d'%(v4(16+4*t),4096*t))
k('s_waitcnt lgkmcnt(1)')
hstore(['buffer_store_dwordx4 %s, v3, %s, %s offen'%(v4(16+4*t),WS,('s70','s72')[t]) for t in range(2)])
k('s_cmp_ge_u32 s3, 2'); k('s_cbranch_scc1 L_x3d')
k('s_waitcnt lgkmcnt(0)')
hstore(['buffer_store_dwordx4 %s, v3, %s, s73 offen'%(v4(24),WS)])
k('L_x3d:')
stamp('epi1')
if OPT['stop']<=3: k('s_branch L_fin')
k('s_mov_b32 s13, 1'); k('s_mov_b32 s14, 0x%x'%X3); k('s_cmp_eq_u32 s12, 1'); k('s_cselect_b32 s15, s15, 0x%x'%H2); k('s_mov_b32 s42, 0x%x'%ST2)
k('s_branch L_pre')
k('L_out:')
k.reset_counts()
for nb in range(5):
    for h2 in range(2): k('v_cvt_pk_bf16_f32 v%d, v%d, v%d'%(16+2*nb+h2,V+4*nb+2*h2,V+4*nb+2*h2+1))
k('s_mul_i32 s67, s3, 5120'); k('s_add_u32 s67, s67, %d'%(LR+20480))
k('v_lshlrev_b32 v10, 5, v8'); k('v_lshl_add_u32 v10, v9, 3, v10'); k('v_add_u32 v10, s67, v10')
for nb in range(5): k('ds_write_b64 v10, %s offset:%d'%(v2(16+2*nb),512*nb))
k('v_bfe_u32 v11, v1, 2, 2'); k('v_and_b32 v12, 3, v1'); k('v_lshl_add_u32 v11, v9, 3, v11'); k('v_lshlrev_b32 v11, 5, v11'); k('v_lshl_add_u32 v11, v12, 3, v11'); k('v_add_u32 v11, s67, v11')
for t in range(3):
    for hh in range(2): tr=k('ds_read_b64_tr_b16 %s, v11 offset:%d'%(v2(32+4*t+2*hh),1024*t+128*hh))
k.srd(44,36,TB)
k('v_mul_u32_u24 v10, 208, v8'); k('v_lshl_add_u32 v10, v9, 4, v10'); k('v_add_u32 v10, s67, v10')
k('s_lshl_b32 s70, s64, 6'); k('s_lshl_b32 s72, s3, 4'); k('s_add_u32 s70, s70, s72'); k('s_mul_i32 s70, s70, 1280'); k('s_mul_i32 s72, s69, 160'); k('s_add_u32 s70, s70, s72')
for t in range(3):
    k('v_add_u32 v12, %d, v1'%(64*t)); k('v_mul_u32_u24 v13, 6554, v12'); k('v_lshrrev_b32 v13, 16, v13'); k('v_mul_u32_u24 v14, 10, v13'); k('v_sub_u32 v12, v12, v14')
    k('v_lshlrev_b32 v12, 4, v12'); k('v_mad_u32_u24 v%d, v13, s%d, v12'%(20+t,72)) if False else None
    k('v_mul_u32_u24 v14, 208, v13'); k('v_add3_u32 v%d, v14, v12, s67'%(16+t)); k('v_mul_u32_u24 v14, 1280, v13'); k('v_add3_u32 v%d, v14, v12, s70'%(20+t))
k.need(tr)
for t in range(3): k('ds_write_b128 v10, %s offset:%d'%(v4(32+4*t),64*t))
rr=[k('ds_read_b128 %s, v%d'%(v4(44+4*t),16+t)) for t in range(3)]
for t in range(3):
    k.need(rr[t])
    if t==2: k('s_mov_b32 exec_hi, 0')
    k('buffer_store_dwordx4 %s, v%d, s[44:47], 0 offen'%(v4(44+4*t),20+t))
k('s_mov_b64 exec, -1')
k('L_fin:')
if OPT['stamps']:
    k('s_waitcnt vmcnt(0)')
    stamp('end')
    k('s_memrealtime s[98:99]'); k('s_waitcnt lgkmcnt(0)'); k('v_writelane_b32 v0, s98, 63')
    k('s_lshl_b32 s70, s2, 2'); k('s_add_u32 s70, s70, s3'); k('s_lshl_b32 s70, s70, 8'); k('s_add_u32 s70, s70, 0x%x'%STAMP)
    k('v_lshlrev_b32 v2, 2, v1'); k('buffer_store_dword v0, v2, %s, s70 offen'%WS)
    json.dump(SN,open('stamps.json','w'))
k('L_end:')
k.end(NAME+'_kernel',512,100,256)
n=k.fix(verbose=bool(OPT.get('verbose')))
hdr=''.join(l for l in open('cdna_kernels/%s.s.ref'%NAME).readlines() if l.startswith(';') and '@launch' not in l and 'Override' not in l and 'grid=ceil' not in l)
open(sys.argv[1],'w').write(k.text(hdr))
print('instructions',sum(1 for i in k.ins if i.mn and not i.label),'nop states added',n)
```

```python
import sys, struct, json
from klib import K, I
NAME='interleave_layers__ssm_conv_h3__glu_gated_geglu__prompt'
OPT=dict(stamps=0, stop=99, fast=1)
for x in sys.argv[2:]:
    kx,vx=x.split('='); OPT[kx]=int(vx)
def fb(x): return struct.unpack('<I',struct.pack('<f',x))[0]

KVT=0x000000; QT=0x280000; X1=0x500000; YB=0x780000; X3=0xA00000; WDF=0xC80000
QR=0xE60000; QNM=0xE62000; ST1=0xE64000; ST2=0xE74000; EX=0xE84000; CS=0xEA4000
FLG=0xEC4000
H1=0x1000000; H2=0x1600000; STAMP=0x2000000
WSB=0x10000000; TB=2048*1280
LW=0; LWU=61440; LR=122880
LA=LR
LH=LR+24576
LCNT=LR+24576+3*4224
C_A=0; C_CV=4; C_MODE=8; C_S1=12; C_G0=16; C_A2=20; C_GO=24; C_S1K=28
SPIN=OPT.get('spin',1<<16)
INV=0x3acccccd
EPS=0x3727c5ac

k=K()
k.launch.append('; @launch grid=(256,1,1) block=(256,1,1) lds=163840')
k.begin(NAME+'_kernel')
SN={}
def stamp(name,lay=False):
    if OPT['stamps']:
        idx=SN.setdefault(name,len(SN))
        k('s_memtime s[98:99]'); k('s_waitcnt lgkmcnt(0)')
        if lay:
            k('s_mul_i32 s97, s13, 16'); k('s_add_u32 s97, s97, %d'%idx); k('s_mov_b32 s96, m0'); k('s_mov_b32 m0, s97'); k('v_writelane_b32 v0, s98, m0'); k('s_mov_b32 m0, s96')
        else: k('v_writelane_b32 v0, s98, %d'%idx)
def v4(r): return 'v[%d:%d]'%(r,r+3)
def v2(r): return 'v[%d:%d]'%(r,r+1)
def a4(r): return 'a[%d:%d]'%(r,r+3)
def S(x): return (lambda: k(x))
def K_(lst):
    for x in lst: t=k(x)
    return t
WS='s[8:11]'
LP=' sc1' if OPT.get('ldsc1',0) else ''

def hstore(instr):
    l1=k.lab('Lf'); l2=k.lab('Lg')
    k('s_cmp_eq_u32 s12, 1'); k('s_cbranch_scc1 %s'%l1)
    nv=k.nv
    for x in instr: k(x+' sc1')
    k('s_branch %s'%l2); k(l1+':')
    k.nv=nv
    for x in instr: t=k(x)
    k(l2+':')
    return t
def poll(loads, check):
    l=k.lab('Lpoll'); d=k.lab('Lpd')
    k('s_mov_b32 s79, 0'); k(l+':')
    for x in loads: k(x)
    k('s_waitcnt vmcnt(0)')
    for x in check: k(x)
    k('s_cbranch_vccz %s'%d)
    k('s_add_u32 s79, s79, 1'); k('s_cmp_lt_u32 s79, s80'); k('s_cbranch_scc1 %s'%l)
    k('s_mov_b32 s80, 0')
    k(d+':')
def flag_addr(line):
    k('s_lshl_b32 s77, s4, 9'); k('s_lshl_b32 s76, s5, 2'); k('s_add_u32 s77, s77, s76'); k('s_add_u32 s77, s77, 0x%x'%(FLG+line))
def island_flag_store(phase, tmp, line=0, sc1=False):
    k('s_add_u32 s78, s6, %s'%phase); k('s_add_u32 s78, s78, s59')
    k('v_mov_b32 v%d, s78'%tmp); k('v_mov_b32 v%d, 0'%(tmp+1))
    flag_addr(line)
    k('s_mov_b64 exec, 1')
    x='buffer_store_dword v%d, v%d, %s, s77 offen'%(tmp,tmp+1,WS)
    if sc1: k(x+' sc1')
    else: hstore([x])
    k('s_mov_b64 exec, -1')
def island_poll_p(phase, tmp, r):
    k('v_and_b32 v%d, 31, v1'%tmp); k('v_lshlrev_b32 v%d, 2, v%d'%(tmp,tmp))
    k('s_lshl_b32 s77, s4, 9'); k('s_add_u32 s77, s77, 0x%x'%FLG)
    ld=lambda i: 'buffer_load_dword v%d, v%d, %s, s77 offen sc1'%(r+i,tmp,WS)
    l=k.lab('Lpp'); d=k.lab('Lpe')
    k(ld(0)); k('s_sleep 3'); k(ld(1)); k('s_sleep 3'); k('s_mov_b32 s79, 0')
    k(l+':')
    for i in range(3):
        k(ld((i+2)%3)); k('s_waitcnt vmcnt(2)')
        K_(['v_subrev_u32 v%d, s6, v%d'%(tmp+1,r+i),'v_and_b32 v%d, -9, v%d'%(tmp+2,tmp+1),'v_subrev_u32 v%d, %s, v%d'%(tmp+2,phase,tmp+2),'v_cmp_le_u32 vcc, 6, v%d'%(tmp+2)])
        k('s_cbranch_vccz %s'%d)
    k('s_add_u32 s79, s79, 1'); k('s_cmp_lt_u32 s79, s80'); k('s_cbranch_scc1 %s'%l); k('s_mov_b32 s80, 0')
    k(d+':')
def island_poll(phase, tmp, nmem=32, line=0):
    k('v_min_u32 v%d, %d, v1'%(tmp,nmem-1)); k('v_lshlrev_b32 v%d, 2, v%d'%(tmp,tmp))
    k('s_lshl_b32 s77, s4, 9'); k('s_add_u32 s77, s77, 0x%x'%(FLG+line))
    poll(['buffer_load_dword v%d, v%d, %s, s77 offen sc1'%(tmp+1,tmp,WS)],
         ['v_subrev_u32 v%d, s6, v%d'%(tmp+1,tmp+1),'v_and_b32 v%d, -9, v%d'%(tmp+2,tmp+1),'v_subrev_u32 v%d, %s, v%d'%(tmp+2,phase,tmp+2),'v_cmp_le_u32 vcc, 6, v%d'%(tmp+2)])
def look_issue(tmp):
    k('v_and_b32 v%d, 31, v1'%tmp); k('v_lshlrev_b32 v%d, 2, v%d'%(tmp,tmp)); k('s_lshl_b32 s77, s4, 9'); k('s_add_u32 s77, s77, 0x%x'%FLG)
    k('buffer_load_dword v%d, v%d, %s, s77 offen sc1'%(tmp+1,tmp,WS))
def look_skip(phase,tmp,label):
    K_(['v_subrev_u32 v%d, s6, v%d'%(tmp+1,tmp+1),'v_and_b32 v%d, -9, v%d'%(tmp+1,tmp+1),'v_subrev_u32 v%d, %s, v%d'%(tmp+1,phase,tmp+1),'v_cmp_le_u32 vcc, 6, v%d'%(tmp+1),
        's_bitset0_b32 vcc_lo, s5','s_cmp_eq_u32 vcc_lo, 0','s_cbranch_scc1 %s'%label])
def tag_from(v):
    if v is None: k('s_mov_b32 s6, s84'); k('s_mov_b32 s59, s85')
    else: k('v_readlane_b32 s6, v%d, s4'%v); k('v_readlane_b32 s59, v%d, s4'%(v+1))
    k('s_cmp_eq_u32 s59, s7'); k('s_cselect_b32 s59, 0, 8'); k('s_cselect_b32 s12, 1, 0')
    k('s_cmp_eq_u32 s6, 0'); k('s_cselect_b32 s12, 0, s12')
    if not OPT['fast']: k('s_mov_b32 s12, 0'); k('s_mov_b32 s59, 8')
def lds_wait(off,tmp):
    l=k.lab('Llw'); d=k.lab('Lld')
    k('v_mov_b32 v%d, %d'%(tmp,LCNT+off)); k('s_mov_b32 s79, 0'); k(l+':')
    k('ds_read_b32 v%d, v%d'%(tmp+1,tmp)); k('s_waitcnt lgkmcnt(0)')
    k('v_cmp_eq_u32 vcc, 0, v%d'%(tmp+1)); k('s_cbranch_vccz %s'%d)
    k('s_add_u32 s79, s79, 1'); k('s_lshr_b32 s81, s79, 3'); k('s_cmp_lt_u32 s81, s80'); k('s_cbranch_scc1 %s'%l)
    k('s_mov_b32 s80, 0')
    k(d+':')
def lds_set(off,val,tmp):
    k('v_mov_b32 v%d, %d'%(tmp,LCNT+off)); k('v_mov_b32 v%d, %s'%(tmp+1,val)); k('ds_write_b32 v%d, v%d'%(tmp,tmp+1))
def mode_from(v):
    k('v_readfirstlane_b32 s12, v%d'%v); k('s_lshr_b32 s12, s12, 1')
def last_arriver(cnt_off, n, tmp, body):
    k('v_mov_b32 v%d, %d'%(tmp,LCNT+cnt_off)); k('v_mov_b32 v%d, 1'%(tmp+1))
    k('s_mov_b64 exec, 1')
    t=k('ds_add_rtn_u32 v%d, v%d, v%d'%(tmp+2,tmp,tmp+1))
    k('s_mov_b64 exec, -1')
    k.need(t)
    k('v_readfirstlane_b32 s78, v%d'%(tmp+2))
    l=k.lab('Lnl')
    k('s_add_u32 s78, s78, 1'); k('s_cmp_lg_u32 s78, %s'%n); k('s_cbranch_scc1 %s'%l)
    body()
    k(l+':')
def g0_chk(r,e): return ['v_xor_b32 v%d, v%d, v%d'%(r+i,r+i,e) for i in range(4)]+['v_or_b32 v%d, v%d, v%d'%(r,r,r+1),'v_or3_b32 v%d, v%d, v%d, v%d'%(r,r,r+2,r+3),'v_cmp_ne_u32 vcc, 0, v%d'%r]
def wdf_list(voff,idx):
    o=[]
    for n_,i in enumerate(idx):
        pre=['s_add_u32 s75, s74, %d'%((i&~3)*1024)] if (i%4==0 or n_==0) else []
        o.append(pre+['buffer_load_dwordx4 %s, v%d, %s, s75 offen offset:%d sc1'%(a4(4*i),voff,WS,(i%4)*1024)])
    return o
WDFN=[0]
def wdf_all(voff):
    if not OPT.get('wrot',0):
        for i in range(60):
            if i%4==0: k('s_add_u32 s75, s74, %d'%(i*1024))
            k('buffer_load_dwordx4 %s, v%d, %s, s75 offen offset:%d%s'%(a4(4*i),voff,WS,(i%4)*1024,' sc1' if OPT.get('wsc',1) else ''))
        return
    WDFN[0]+=1; n=WDFN[0]
    k('s_lshr_b32 s76, s5, 3'); k('s_mov_b32 s77, 0')
    k('L_wd%d:'%n)
    for bl in range(1,4): k('s_cmp_eq_u32 s76, %d'%bl); k('s_cbranch_scc1 L_wd%d_%d'%(n,bl))
    for bl in range(4):
        k('L_wd%d_%d:'%(n,bl))
        for i in range(15):
            if i%4==0: k('s_add_u32 s75, s74, %d'%((15*bl+i)*1024))
            k('buffer_load_dwordx4 %s, v%d, %s, s75 offen offset:%d sc1'%(a4(4*(15*bl+i)),voff,WS,(i%4)*1024))
        if bl<3: k('s_branch L_wd%d_n'%n)
    k('L_wd%d_n:'%n)
    k('s_add_u32 s76, s76, 1'); k('s_and_b32 s76, s76, 3'); k('s_add_u32 s77, s77, 1'); k('s_cmp_lt_u32 s77, 4'); k('s_cbranch_scc1 L_wd%d'%n)
def wdf_base():
    k('s_and_b32 s74, s5, 7'); k('s_mul_i32 s74, s74, 48'); k('s_mul_i32 s75, s3, 12'); k('s_add_u32 s74, s74, s75')
    k('s_mul_i32 s74, s74, 5120'); k('s_add_u32 s74, s74, 0x%x'%WDF)

k('s_cmp_ge_u32 s2, 256'); k('s_cbranch_scc1 L_end')
k('s_load_dwordx16 s[16:31], s[0:1], 0'); k('s_load_dwordx8 s[32:39], s[0:1], 64'); k('s_load_dwordx2 s[40:41], s[0:1], 96')
k('v_lshrrev_b32 v2, 6, v0'); k('v_and_b32 v1, 63, v0')
k('v_readfirstlane_b32 s3, v2')
k('s_and_b32 s4, s2, 7'); k('s_lshr_b32 s5, s2, 3')
k('s_getreg_b32 s7, hwreg(HW_REG_XCC_ID, 0, 4)')
k('s_mov_b32 s12, 0'); k('s_mov_b32 s13, 0'); k('s_mov_b32 s80, %d'%SPIN)
k('s_mov_b32 s14, 0x%x'%X1); k('s_mov_b32 s15, 0x%x'%H1); k('s_mov_b32 s42, 0x%x'%ST1)
k('s_waitcnt lgkmcnt(0)')
k.srd(8,40,WSB)
stamp('start')
if OPT['stamps']: k('s_memrealtime s[98:99]'); k('s_waitcnt lgkmcnt(0)'); k('v_writelane_b32 v0, s98, 62')
k('s_cmp_eq_u32 s3, 3'); k('s_cbranch_scc1 L_loader')

k.srd(44,18,TB); k.srd(48,20,TB); k.srd(56,22,640*8)
k('v_and_b32 v2, 3, v1'); k('v_lshrrev_b32 v3, 2, v1')
k('s_lshl_b32 s64, s3, 2'); k('v_add_u32 v4, s64, v2'); k('v_min_u32 v4, 9, v4')
k('s_mul_i32 s65, s4, 80'); k('v_lshl_add_u32 v4, v4, 3, s65')
k('s_mul_i32 s66, s5, %d'%(64*1280)); k('v_mul_u32_u24 v5, %d, v3'%(4*1280))
k('v_lshl_add_u32 v5, v4, 1, v5'); k('v_add_u32 v5, s66, v5')
k('v_subrev_u32 v6, 3840, v5'); k('v_lshlrev_b32 v7, 3, v4')
tk=[]
for r in range(4): tk.append(k('buffer_load_dwordx4 %s, v5, s[44:47], 0 offen offset:%d'%(v4(28+4*r),1280*r)))
tv=[k('buffer_load_dwordx4 %s, v5, s[48:51], 0 offen offset:%d'%(v4(44+4*r),1280*r)) for r in range(4)]
for r in range(3): tk.append(k('buffer_load_dwordx4 %s, v6, s[44:47], 0 offen offset:%d'%(v4(16+4*r),1280*r)))
tw=[k('buffer_load_dwordx4 %s, v7, s[56:59], 0 offen offset:%d'%(v4(76+4*r),16*r)) for r in range(4)]
k('s_barrier')
k.srd(52,16,TB); k.srd(60,24,TB)
k('s_mul_i32 s67, s5, 3'); k('s_add_u32 s67, s67, s3'); k('s_min_u32 s68, s67, 79'); k('s_add_u32 s68, s65, s68')
k('v_lshlrev_b32 v7, 4, v1')
k('s_mul_i32 s69, s3, 4224'); k('s_add_u32 s69, s69, %d'%LH)
if OPT.get('qe',1)>=1:
    for r in range(4): k('buffer_load_dwordx4 %s, v5, s[52:55], 0 offen offset:%d'%(v4(60+4*r),1280*r))
if OPT.get('qe',1)==2:
    k('s_add_u32 m0, s69, 32'); k('s_lshl_b32 s70, s68, 12')
    for t in range(4): k('buffer_load_dwordx4 v7, s[60:63], s70 offen offset:%d lds'%(1024*t))
k('s_and_b32 s71, s68, -2'); k('s_lshl_b32 s71, s71, 1'); k('s_load_dword s72, s[26:27], s71')
k('v_mov_b32 v8, 0'); k('v_mov_b32 v9, 0'); k('v_lshlrev_b32 v10, 3, v1'); k('v_add_u32 v10, s69, v10')
k('s_mov_b64 exec, 15'); k('ds_write_b64 v10, v[8:9]'); k('s_mov_b64 exec, -1')
k('s_mov_b32 s86, 0x05040100'); k('s_mov_b32 s87, 0x07060302'); k('s_mov_b32 s64, 0xffff0000')
k('s_lshl_b32 s66, s3, 13'); k('s_add_u32 s66, s66, %d'%LA)
k('v_lshrrev_b32 v8, 1, v3'); k('v_lshlrev_b32 v9, 1, v2'); k('v_xor_b32 v8, v8, v9'); k('v_lshlrev_b32 v8, 4, v8')
k('v_and_b32 v9, 1, v3'); k('v_lshl_add_u32 v8, v9, 3, v8'); k('v_lshl_add_u32 v8, v2, 10, v8'); k('v_add_u32 v8, s66, v8')
k('v_lshrrev_b32 v9, 3, v1'); k('v_and_b32 v10, 7, v1')
k('v_lshlrev_b32 v11, 7, v9'); k('v_add_u32 v11, s66, v11')
k('s_lshl_b32 s70, s3, 5'); k('s_add_u32 s70, s70, s65')
k('v_add_u32 v12, s70, v9'); k('v_lshlrev_b32 v12, 12, v12'); k('v_lshl_add_u32 v12, v10, 4, v12')
k('s_lshl_b32 s70, s5, 7'); k('v_add_u32 v12, s70, v12')
k('s_waitcnt lgkmcnt(0)')
k('s_bitcmp1_b32 s68, 0'); k('s_cselect_b32 s70, 0, 16'); k('s_lshl_b32 s72, s72, s70'); k('s_and_b32 s72, s72, 0xffff0000'); k('s_mov_b32 s73, s72')
k('s_lshl_b32 s83, s4, 3')
k.need(tk[0])
k('s_load_dwordx2 s[84:85], s[38:39], s83')
stamp('Ak0')
k.need(tk,tw)
stamp('Akv')
P=96; KS=112; VV=128; OUT=144
for dd in range(4):
    for par in range(2):
        sel='s86' if par==0 else 's87'
        for s in range(-2,4):
            k('v_perm_b32 v%d, v%d, v%d, %s'%(P+8*par+s+2, 16+4*(s-1+3)+dd, 16+4*(s+3)+dd, sel))
    for par in range(2):
        d=2*dd+par
        for s in range(4): k('v_dot2_f32_bf16 v%d, v%d, v%d, 0'%(KS+2*s+par, P+8*par+s, 76+2*d+1))
    for s in range(4):
        k('v_lshlrev_b32 v%d, 16, v%d'%(VV+2*s,44+4*s+dd)); k('v_and_b32 v%d, s64, v%d'%(VV+2*s+1,44+4*s+dd))
    for par in range(2):
        d=2*dd+par
        for s in range(4): k('v_dot2_f32_bf16 v%d, v%d, v%d, v%d'%(KS+2*s+par, P+8*par+s+2, 76+2*d, KS+2*s+par))
    o=OUT+4*(dd&1)
    k('s_nop 1')
    for s in range(4): k('v_pk_mul_f32 %s, %s, %s'%(v2(KS+2*s),v2(KS+2*s),v2(VV+2*s)))
    for par in range(2):
        for sp in range(2): k('v_cvt_pk_bf16_f32 v%d, v%d, v%d'%(o+2*par+sp, KS+4*sp+par, KS+4*sp+2+par))
    for par in range(2): k('ds_write_b64 v8, %s offset:%d'%(v2(o+2*par),(2*dd+par)*128))
k('s_waitcnt lgkmcnt(0)')
rd=[]
for t in range(4):
    k('v_xor_b32 v13, %d, v10'%(2*t)); k('v_lshl_add_u32 v%d, v13, 4, v11'%(96+t))
    rd.append(k('ds_read_b128 %s, v%d offset:%d'%(v4(16+4*t),96+t,1024*t)))
tag_from(None)
k('v_add_u32 v13, 0x10000, v12')
def a_stores(reg,base,nm):
    k('s_mov_b32 s76, %d'%base); k('s_mov_b32 s77, %d'%(base+32768))
    k('s_waitcnt lgkmcnt(0)')
    hstore(['buffer_store_dwordx4 %s, v12, %s, %s offen'%(v4(reg+4*t),WS,('s76','s77')[t]) for t in range(2)])
    k('s_cmp_eq_u32 s3, 2'); k('s_cbranch_scc1 %s'%nm)
    hstore(['buffer_store_dwordx4 %s, v13, %s, %s offen'%(v4(reg+8+4*t),WS,('s76','s77')[t]) for t in range(2)])
    k(nm+':')
a_stores(16,KVT,'L_akv')
stamp('Acmp')
k.reset_counts()
QE=OPT.get('qe',1)
if QE==0:
    tq=[k('buffer_load_dwordx4 %s, v5, s[52:55], 0 offen offset:%d'%(v4(60+4*r),1280*r)) for r in range(4)]
else: tq=[]
if QE<2:
    k('s_add_u32 m0, s69, 32'); k('s_lshl_b32 s70, s68, 12')
    for t in range(4): k('buffer_load_dwordx4 v7, s[60:63], s70 offen offset:%d lds'%(1024*t))
k.srd(52,38,256)
k('s_waitcnt vmcnt(%d)'%(8,4,0)[QE])
stamp('Aq')
def kv_flag():
    k('s_cmp_lg_u32 s6, 0'); k('s_cbranch_scc1 L_tagok')
    k('v_and_b32 v228, 7, v1'); k('v_lshlrev_b32 v228, 3, v228')
    poll(['buffer_load_dwordx2 v[14:15], v228, s[52:55], 0 offen sc1'],['v_cmp_eq_u32 vcc, 0, v14'])
    tag_from(14)
    k('L_tagok:')
    island_flag_store('1',228)
sv=(k.nv,k.dv)
last_arriver(C_A,'3',224,kv_flag)
k.nv,k.dv=sv
k.need(tq)
stamp('Atag')
k('v_and_b32 v228, 31, v1'); k('v_lshlrev_b32 v228, 2, v228'); k('s_lshl_b32 s83, s4, 9'); k('s_add_u32 s83, s83, 0x%x'%FLG)
tsp=k('buffer_load_dword v229, v228, %s, s83 offen sc1'%WS)
for dd in range(4):
    o=OUT+4*(dd&1)
    for par in range(2):
        sel='s86' if par==0 else 's87'
        for sp in range(2): k('v_perm_b32 v%d, v%d, v%d, %s'%(o+2*par+sp, 60+4*(2*sp+1)+dd, 60+4*(2*sp)+dd, sel))
    for par in range(2): k('ds_write_b64 v8, %s offset:%d'%(v2(o+2*par),4096+(2*dd+par)*128))
for t in range(4): k('ds_read_b128 %s, v%d offset:%d'%(v4(32+4*t),96+t,4096+1024*t))
a_stores(32,QT,'L_aq')
k('v_mov_b32 v8, 0'); k('v_lshlrev_b32 v10, 2, v1'); k('v_add_u32 v10, s66, v10'); k('ds_write_b32 v10, v8')
UB=16; HB=144; AC=[208,216]; YR=224; KVr=232; CY=248
CAR=4608; ZER=5632; DUM=6144
k('v_mov_b32 v9, 0'); k('v_lshl_add_u32 v10, v1, 3, s66'); k('ds_write_b64 v10, v[8:9] offset:%d'%ZER)
k('s_mov_b64 exec, 3'); k('ds_write_b64 v10, v[8:9] offset:%d'%CAR); k('s_mov_b64 exec, -1')
k('v_and_b32 v10, 3, v1'); k('v_bfe_u32 v11, v1, 2, 2'); k('v_lshrrev_b32 v12, 4, v1')
k('v_lshlrev_b32 v2, 5, v10'); k('v_lshl_add_u32 v2, v12, 6, v2'); k('v_lshl_add_u32 v2, v11, 3, v2'); k('s_add_u32 s71, s66, 32'); k('v_add_u32 v2, s71, v2')
k('v_sub_u32 v3, v10, v11'); k('v_lshlrev_b32 v3, 3, v3'); k('v_lshlrev_b32 v14, 6, v12'); k('v_sub_u32 v3, v3, v14')
k('s_add_u32 s71, s69, 224'); k('v_add_u32 v3, s71, v3')
k('v_lshl_add_u32 v4, v1, 2, s69'); k('v_lshl_add_u32 v5, v1, 2, s66')
k('v_mov_b32 v14, s69'); k('v_mov_b32 v15, s66')
k('v_and_b32 v8, 8, v1'); k('v_cmp_ne_u32 vcc, 0, v8'); k('v_and_b32 v8, 7, v1'); k('v_lshrrev_b32 v9, 3, v1'); k('v_cndmask_b32 v6, v14, v15, vcc')
k('v_lshl_add_u32 v6, v12, 8, v6'); k('v_lshl_add_u32 v6, v8, 5, v6')
k('s_add_u32 s71, s66, %d'%DUM); k('v_lshl_add_u32 v10, v1, 4, s71'); k('s_add_u32 s71, s66, %d'%(CAR+16)); k('v_writelane_b32 v10, s71, 63')
k('s_add_u32 s71, s66, %d'%CAR); k('v_lshl_add_u32 v11, v9, 4, s71'); k('s_add_u32 s71, s66, %d'%ZER); k('v_mov_b32 v14, s71')
k('v_cmp_eq_u32 vcc, 0, v8'); k('s_mov_b32 s71, 81920'); k('v_mul_lo_u32 v9, v9, s71'); k('v_cndmask_b32 v11, v14, v11, vcc')
k('v_lshl_add_u32 v9, v8, 4, v9'); k('s_lshl_b32 s71, s68, 7'); k('v_add_u32 v9, s71, v9')
k('v_lshlrev_b32 v8, 5, v1')
k('s_lshl_b32 s65, s68, 12')
wdf_base()
k('s_add_u32 m0, s66, 256'); k('s_add_u32 s70, s65, %d'%KVT)
kvdma=['buffer_load_dwordx4 v7, %s, s70 offen offset:%d sc1 lds'%(WS,1024*t) for t in range(4)]
k('s_waitcnt vmcnt(4)'); k('s_cmp_lg_u32 s3, 2'); k('s_cbranch_scc1 L_lk'); k('s_waitcnt vmcnt(2)'); k('L_lk:')
k('v_subrev_u32 v229, s6, v229'); k('v_add_u32 v229, -1, v229'); k('v_cmp_le_u32 vcc, 6, v229')
k('s_cmp_eq_u64 vcc, 0'); k('s_cselect_b32 s88, s12, 0')
stamp('Acomp')
k('s_cmp_eq_u32 s88, 0'); k('s_cbranch_scc1 L_nospec')
K_(kvdma); k('s_waitcnt vmcnt(4)'); k('s_branch L_spec')
k('L_nospec:')
k('s_waitcnt vmcnt(0)')
k('L_spec:')
stamp('Adrain')
def rdH(m): return ['ds_read_b64_tr_b16 %s, v3 offset:%d'%(v2(HB+4*m+2*hh),256*m+32*(1-hh)) for hh in range(2)]
def rdU(n,o): return ['ds_read_b64_tr_b16 %s, v2 offset:%d'%(v2(UB+8*n+4*o+2*hh),256*n+128*o+32*hh) for hh in range(2)]
def s1_body():
    k('s_cmp_lg_u32 s6, 0'); k('s_cbranch_scc1 L_tagok2')
    k('v_and_b32 v228, 7, v1'); k('v_lshlrev_b32 v228, 3, v228')
    poll(['buffer_load_dwordx2 v[14:15], v228, s[52:55], 0 offen sc1'],['v_cmp_eq_u32 vcc, 0, v14'])
    tag_from(14)
    k('L_tagok2:')
    island_flag_store('2',12)
    k('s_cmp_eq_u32 s88, 1'); k('s_cbranch_scc1 L_s1ok')
    k('s_cmp_eq_u32 s12, 0'); k('s_cbranch_scc1 L_s1slow')
    if OPT.get('pp',1): island_poll_p('1',12,240)
    else: island_poll('1',12)
    k('v_and_b32 v13, 8, v13'); k('v_cmp_ne_u32 vcc, 0, v13'); k('s_cbranch_vccz L_s1ok')
    k('buffer_wbl2 sc1'); k('s_waitcnt vmcnt(0)'); k('s_mov_b32 s12, 0')
    k('L_s1slow:')
    island_flag_store('1',12,line=384,sc1=True); island_poll('1',12,line=384)
    k('L_s1ok:')
    k('v_mov_b32 v12, %d'%(LCNT+C_MODE)); k('s_add_u32 s76, s12, 1'); k('v_mov_b32 v14, s76'); k('v_mov_b32 v15, s6'); k('ds_write_b64 v12, v[14:15]')
last_arriver(C_A2,'3',224,s1_body)
def mode_wait(tmp):
    lds_wait(C_MODE,tmp); mode_from(tmp+1)
    k('ds_read_b32 v%d, v%d offset:4'%(tmp+1,tmp)); k('s_waitcnt lgkmcnt(0)'); k('v_readfirstlane_b32 s6, v%d'%(tmp+1))
    k('s_lshl_b32 s59, s12, 3'); k('s_xor_b32 s59, s59, 8')
k('s_cmp_eq_u32 s88, 1'); k('s_cbranch_scc1 L_s1x')
mode_wait(224)
k('L_s1x:')
stamp('S1')
k('s_cmp_lt_u32 s67, 80'); k('s_cbranch_scc1 L_conv')
lds_set(C_S1K,'1',12)
k('s_cmp_lg_u32 s5, 31'); k('s_cbranch_scc1 L_nolead')
k('s_cmp_eq_u32 s3, 0'); k('s_cbranch_scc1 L_lead0')
k('s_cmp_eq_u32 s3, 1'); k('s_cbranch_scc1 L_nolead')
island_poll('2',10,line=128+4096)
k('L_leadp:')
k('s_add_u32 s78, s6, 1'); k('v_mov_b32 v10, s78'); k('v_lshlrev_b32 v11, 9, v1')
k('s_lshl_b32 s77, s4, 2'); k('s_lshl_b32 s76, s3, 5'); k('s_add_u32 s77, s77, s76'); k('s_add_u32 s77, s77, 0x%x'%(FLG+256))
k('s_mov_b64 exec, 0xff'); k('buffer_store_dword v10, v11, %s, s77 offen sc1'%WS); k('s_mov_b64 exec, -1')
k('s_cmp_eq_u32 s3, 0'); k('s_cbranch_scc1 L_pre')
k('L_nolead:')
lds_wait(C_G0,224)
k('s_branch L_wdall2')
k('L_lead0:')
lds_wait(C_G0,224)
wdf_all(7)
island_poll('3',10,27)
k('s_branch L_leadp')

k('L_conv:')
k.reset_counts()
k('s_cmp_eq_u32 s88, 1'); k('s_cbranch_scc1 L_kvi')
tU=[k(x) for x in kvdma]
k('L_kvi:')
tok={}
PRE=4
for m in range(PRE):
    for x in rdH(m): tok['H',m]=k(x)
k('v_lshl_add_u32 v14, v1, 4, s66')
k.need(tU[0])
for n in range(PRE-1):
    for o in range(2):
        for x in rdU(n,o): tok['U',n]=k(x)
k.need(tU[3])
for o in range(2):
    for x in rdU(PRE-1,o): tok['U',PRE-1]=k(x)
for c in range(4): k('ds_read_b128 %s, v14 offset:%d'%(v4(KVr+4*c),256+1024*c))
lds_set(C_S1K,'1',12)
DP='wave_shr:1 row_mask:0xf bank_mask:0xf bound_ctrl:0'
def post(b):
    E=AC[b&1]; O=E+4
    g=[]
    for r in (2,1,0):
        for A in (E,O): g.append('v_add_f32_dpp v%d, v%d, v%d %s'%(A+r,A+r+1,A+r,DP))
    g+=['ds_write_b32 v4, v%d offset:%d'%(E,256*b),'ds_write_b32 v5, v%d offset:%d'%(O,256*b),
        'ds_write_b128 v10, %s offset:%d'%(v4(E),32*b),'ds_write_b128 v10, %s offset:%d'%(v4(O),32*b+16)]
    return g
def tk_(key,x):
    def f(): tok[key]=k(x)
    return f
def pub_loads(addr,val,tag,which):
    return ['v_and_b32 v%d, 7, v1'%addr,'v_lshlrev_b32 v%d, 3, v%d'%(tag,addr),'v_lshlrev_b32 v%d, 2, v%d'%(addr,addr),
            's_lshl_b32 s71, s4, 9','s_add_u32 s71, s71, 0x%x'%(FLG+256+32*which),
            'buffer_load_dword v%d, v%d, s[52:55], 0 offen sc1'%(tag,tag),'buffer_load_dword v%d, v%d, %s, s71 offen sc1'%(val,addr,WS)]
def pub_chk(val,tag): return ['v_sub_u32 v%d, v%d, v%d'%(val,val,tag),'v_cmp_ne_u32 vcc, 1, v%d'%val]
def gl(): return ['v_lshrrev_b32 v12, 3, v1','v_lshlrev_b32 v253, 3, v12','v_and_b32 v13, 7, v1','v_lshlrev_b32 v13, 4, v13','v_lshl_add_u32 v12, v12, 9, v13','s_mov_b32 s71, 0x%x'%(FLG+128),
                  'buffer_load_dword v252, v253, s[52:55], 0 offen sc1','buffer_load_dwordx4 %s, v12, %s, s71 offen sc1'%(v4(CY),WS)]
def gchk(r,e): return ['v_add_u32 v%d, 1, v%d'%(e,e)]+['v_xor_b32 v%d, v%d, v%d'%(r+i,r+i,e) for i in range(4)]+\
        ['v_or_b32 v%d, v%d, v%d'%(r,r,r+1),'v_or3_b32 v%d, v%d, v%d, v%d'%(r,r,r+2,r+3),'v_cmp_ne_u32 vcc, 0, v%d'%r]
def flag_loads():
    K_(gl())
    k('v_and_b32 v254, 31, v1'); k('v_lshlrev_b32 v254, 2, v254'); k('s_lshl_b32 s83, s4, 9'); k('s_add_u32 s83, s83, 0x%x'%FLG)
    tok['G']=k('buffer_load_dword v255, v254, %s, s83 offen sc1'%WS)
def stats_loads():
    k.need(tok['G'])
    K_(gchk(CY,252))
    k('s_cbranch_vccz L_gqok')
    sv=(k.nv,k.dv)
    poll(['s_sleep 8']+gl(),gchk(CY,252))
    k.nv,k.dv=sv
    k('L_gqok:')
    q2=['v_subrev_u32 v255, s6, v255','v_add_u32 v255, -2, v255','v_cmp_le_u32 vcc, 6, v255']
    k('s_cmp_eq_u32 s12, 0'); k('s_cbranch_scc1 L_q2ok')
    K_(q2); k('s_cbranch_vccz L_q2ok')
    sv=(k.nv,k.dv)
    poll(['buffer_load_dword v255, v254, %s, s83 offen sc1'%WS],q2)
    k.nv,k.dv=sv
    k('L_q2ok:')
    if OPT.get('pause',0)==1: k('v_mov_b32 v12, %d'%(LCNT+C_GO)); k('v_mov_b32 v13, 1'); k('s_mov_b64 exec, 1'); k('ds_add_u32 v12, v13'); k('s_mov_b64 exec, -1')
def chunk_in(c):
    f=[lambda: (k('s_add_u32 s70, s65, %d'%(QT+1024*c)),k('buffer_load_dwordx4 %s, v7, %s, s70 offen sc1'%(a4(64+4*c),WS)))]
    for j in range(4):
        def g(j=j):
            if j%2==0: k('s_mov_b32 s71, %d'%((QR,QNM)[j>>1]+2048*c))
            tok['st',c]=k('buffer_load_dwordx4 %s, v8, %s, s71 offen offset:%d%s'%(a4(16*c+4*j),WS,16*(j&1),' sc1' if OPT.get('stsc',0) else ''))
        f.append(g)
    return f
def chunk_store(c,xq,xy):
    return ['s_mov_b32 s70, %d'%(X1+8*81920*c),'buffer_store_dwordx4 %s, v9, %s, s70 offen sc1'%(v4(xq),WS),
            's_mov_b32 s70, %d'%(YB+8*81920*c),'buffer_store_dwordx4 %s, v9, %s, s70 offen sc1'%(v4(xy),WS)]
def chunk_compute(c):
    KV=KVr+4*c
    f=[S('ds_read_b128 %s, v6 offset:%d'%(v4(YR),1024*c)),S('ds_read_b128 %s, v6 offset:%d'%(v4(YR+4),1024*c+16)),
       tk_(('cy',c),'ds_read_b128 %s, v11 offset:%d'%(v4(CY),128*c))]
    for i in range(4):
        def a0(i=i):
            if i==0: k.need(tok['st',c])
            k('v_accvgpr_read_b32 v12, a%d'%(64+4*c+i))
        f+=[a0,S('v_accvgpr_read_b32 v252, a%d'%(16*c+2*i)),S('v_accvgpr_read_b32 v253, a%d'%(16*c+2*i+1)),
            S('v_accvgpr_read_b32 v254, a%d'%(16*c+8+2*i)),S('v_accvgpr_read_b32 v255, a%d'%(16*c+8+2*i+1)),
            S('v_lshlrev_b32 v14, 16, v%d'%(KV+i)),S('v_and_b32 v15, s64, v%d'%(KV+i))]
        if i==0:
            def c0():
                k.need(tok['cy',c]); k('v_add_f32 v%d, v%d, v%d'%(YR,YR,CY+1))
            f+=[c0,S('v_add_f32 v%d, v%d, v%d'%(YR+1,YR+1,CY+2)),S('v_add_f32 v%d, v%d, v%d'%(YR+2,YR+2,CY+3))]
        y0=YR+2*i
        if c<3:
            f+=[S('v_fmac_f32 v%d, s72, v14'%y0),S('v_fmac_f32 v%d, s72, v15'%(y0+1)),
                S('v_lshlrev_b32 v14, 16, v12'),S('v_and_b32 v15, s64, v12'),
                S('v_fmac_f32 v254, v14, v252'),S('v_fmac_f32 v255, v15, v253'),
                S('v_cvt_pk_bf16_f32 v%d, v%d, v%d'%(KV+i,y0,y0+1)),
                S('v_fmac_f32 v14, v254, v%d'%y0),S('v_fmac_f32 v15, v255, v%d'%(y0+1)),
                S('v_cvt_pk_bf16_f32 v%d, v14, v15'%(CY+i))]
        else:
            f+=[S('v_pk_fma_f32 %s, v[14:15], s[72:73], %s op_sel_hi:[1,0,1]'%(v2(y0),v2(y0))),
                S('v_lshlrev_b32 v14, 16, v12'),S('v_and_b32 v15, s64, v12'),
                S('v_pk_fma_f32 v[252:253], v[14:15], v[252:253], v[254:255]'),
                S('v_cvt_pk_bf16_f32 v%d, v%d, v%d'%(KV+i,y0,y0+1)),
                S('v_pk_fma_f32 v[252:253], v[252:253], %s, v[14:15]'%v2(y0)),
                S('v_cvt_pk_bf16_f32 v%d, v252, v253'%(CY+i))]
    if c<3: f.append(S('ds_write_b128 v6, %s offset:%d'%(v4(CY),1024*c)))
    return f
pend=[]
WE0=OPT.get('we0',8); NWE=OPT.get('nwe',12)
wl=wdf_list(7,range(20,20+NWE))
def wd_flagload():
    K_(pub_loads(13,254,255,2)); tok['W']=('v',k.nv)
def wd_check():
    k.need(tok['W']); K_(pub_chk(254,255)); k('s_cbranch_vccz L_wdok')
    sv=(k.nv,k.dv); poll(pub_loads(13,254,255,2),pub_chk(254,255)); k.nv,k.dv=sv
    k('L_wdok:')
CC={10:0,12:1,14:2}
for b in range(16):
    postg=[S(x) for x in post(b-1)] if b>0 else []
    rds=[]
    if b+PRE<16:
        rds=[tk_(('H',b+PRE),x) for x in rdH(b+PRE)]+[tk_(('U',b+PRE),x) for o in range(2) for x in rdU(b+PRE,o)]
    fill=rds+postg
    if b==OPT.get('gld',0): fill.append(flag_loads)
    if b==OPT.get('gst',3): fill.append(stats_loads)
    G0=OPT.get('gst',3)
    if b>G0 and b<=G0+8:
        ci=chunk_in((b-G0-1)//2); ci=ci[:3] if (b-G0-1)%2==0 else ci[3:]
        step=max(1,len(fill)//(len(ci)+1))
        for n_,f_ in enumerate(ci): fill.insert(min(len(fill),(n_+1)*step+n_),f_)
    if b==WE0-2: fill.append(wd_flagload)
    if b==WE0: fill.insert(0,wd_check)
    if b in CC:
        cc=chunk_compute(CC[b]); h=(len(cc)*(b+1))//(2*b+3)
        fill+=cc[:h]; pend=cc[h:]
    elif pend: fill+=pend; pend=[]
    if b>=WE0 and wl and b<=OPT.get('we1',11):
        tot=sum(x+1 for x in range(b,OPT.get('we1',11)+1)); n_=-(-len(wl)*(b+1)//tot)
        step=max(1,len(fill)//(n_+1))
        for j in range(n_):
            grp=wl.pop(0); fill.insert(min(len(fill),(j+1)*step+j),(lambda grp=grp: K_(grp)))
    order=list(range(1,b))+([0,b] if b>0 else [0])
    mf=[]
    for idx,n in enumerate(order):
        for o in range(2):
            acc=AC[b&1]+4*o
            mf.append((n,b-n,'v_mfma_f32_16x16x32_bf16 %s, %s, %s, %s'%(v4(acc),v4(UB+8*n+4*o),v4(HB+4*(b-n)),'0' if idx==0 else v4(acc))))
    nf=len(fill); nm=len(mf)
    if b in(0,5,9,13): stamp('cv%d'%b)
    lead=0 if rds else min(4,nm-1)
    for i,(n,m,x) in enumerate(mf):
        k.need(tok['U',n],tok['H',m])
        k(x)
        if i>=lead:
            for f in fill[((i-lead)*nf)//(nm-lead):((i-lead+1)*nf)//(nm-lead)]: f()
tb=[k('ds_read_b128 %s, v6 offset:%d'%(v4(UB+4*c),1024*c)) for c in range(3)]
for c in range(3):
    k.need(tb[c]); K_(chunk_store(c,UB+4*c,KVr+4*c))
for x in post(15): k(x)
for f in chunk_compute(3): f()
K_(chunk_store(3,CY,KVr+12))
stamp('conv')
k('s_waitcnt vmcnt(0)')
stamp('convdr')
k('s_cmp_eq_u32 s5, 26'); k('s_cselect_b32 s70, 2, 3')
def cv_done():
    island_flag_store('3',14)
    if OPT.get('gate',1): k('s_waitcnt vmcnt(0)'); lds_set(C_GO,'1',14)
last_arriver(C_CV,'s70',10,cv_done)
if OPT.get('gate',1): lds_wait(C_GO,10)
for grp in wdf_list(7,list(range(0,20))+list(range(20+NWE,60))): K_(grp)
k('s_branch L_pre')
k('L_wdall2:')
wdf_all(7)
k('s_branch L_pre')

k('L_loader:')
k.reset_counts()
for i in range(4): k('v_mov_b32 v%d, 0'%(8+i))
k.srd(60,38,256)
k('s_cmp_lg_u32 s5, 0'); k('s_cbranch_scc1 L_notag')
k('s_memrealtime s[64:65]'); k('s_waitcnt lgkmcnt(0)'); k('s_lshl_b32 s64, s64, 4'); k('s_or_b32 s64, s64, 0x80000000')
k('v_mov_b32 v12, s64'); k('v_mov_b32 v13, s7'); k('s_lshl_b32 s65, s4, 3')
k('s_mov_b64 exec, 1'); k('buffer_store_dwordx2 v[12:13], v8, s[60:63], s65 offen sc1'); k('s_mov_b64 exec, -1')
k('L_notag:')
k.reset_counts()
k('v_mov_b32 v13, %d'%LCNT); k('ds_write_b128 v13, v[8:11]'); k('ds_write_b128 v13, v[8:11] offset:16')
k.srd(44,16,TB)
k('v_lshrrev_b32 v2, 3, v1'); k('v_and_b32 v3, 7, v1'); k('s_lshl_b32 s64, s2, 3'); k('v_add_u32 v4, s64, v2')
k('v_mul_u32_u24 v5, 1280, v4'); k('v_lshl_add_u32 v5, v3, 4, v5')
tq=[k('buffer_load_dwordx4 %s, v5, s[44:47], 0 offen offset:%d'%(v4(16+4*t),128*t)) for t in range(10)]
k('s_waitcnt lgkmcnt(0)'); k('s_barrier')
k.srd(48,34,1536*1280); k.srd(52,30,640*3072); k.srd(56,32,640*3072)
LST=LWU+51200
for t in range(5):
    k('v_add_u32 v6, %d, v1'%(64*t)); k('v_mul_u32_u24 v7, 6554, v6'); k('v_lshrrev_b32 v7, 16, v7')
    k('v_mul_u32_u24 v12, 10, v7'); k('v_sub_u32 v6, v6, v12'); k('v_mul_u32_u24 v7, 1280, v7'); k('v_lshl_add_u32 v%d, v6, 4, v7'%(60+t))
for e in range(2):
    k('s_lshl_b32 s65, s2, 1'); k('s_add_u32 s65, s65, %d'%e); k('s_cmp_ge_u32 s65, 384'); k('s_cselect_b32 s66, 384, 0'); k('s_sub_u32 s65, s65, s66')
    k('s_and_b32 s66, s65, 7'); k('s_lshr_b32 s67, s65, 3')
    k('s_mul_i32 s68, s67, %d'%(32*1280)); k('s_mul_i32 s69, s66, 160'); k('s_add_u32 s%d, s68, s69'%(83+e))
    k('s_mul_i32 s69, s66, 48'); k('s_add_u32 s69, s69, s67'); k('s_mul_i32 s69, s69, 5120'); k('s_add_u32 s%d, s69, 0x%x'%(70+e,WDF))
def wd_tiles():
    for e in range(2):
        for t in range(5):
            k('s_mov_b32 m0, %d'%(LST+5120*e+1024*t)); tw_=k('buffer_load_dwordx4 v%d, s[48:51], s%d offen lds'%(60+t,83+e))
    return tw_
k('v_lshlrev_b32 v7, 4, v1')
for t in range(3):
    k('v_add_u32 v6, %d, v1'%(64*t)); k('v_mul_u32_u24 v8, 10923, v6'); k('v_lshrrev_b32 v8, 16, v8')
    k('v_mul_u32_u24 v9, 6, v8'); k('v_sub_u32 v6, v6, v9'); k('v_mul_u32_u24 v8, 3072, v8'); k('v_lshl_add_u32 v%d, v6, 4, v8'%(66+t)); k('v_subrev_u32 v%d, %d, v%d'%(66+t,1024*t,66+t))
k('s_mul_i32 s72, s5, 96'); k('s_mov_b32 s73, 0'); k('s_mov_b32 s82, 0')
NI=[0]
def w1_issue():
    for gu in range(2):
        k('s_add_u32 m0, s73, %d'%(LWU*gu))
        for t in range(3): k('buffer_load_dwordx4 v%d, s[%d:%d], s72 offen offset:%d%s lds'%(66+t,52+4*gu,55+4*gu,1024*t,' nt' if OPT.get('w1nt',0) else ''))
    k('s_add_u32 s72, s72, %d'%(32*3072)); k('s_add_u32 s73, s73, 3072')
    NI[0]+=1
k('s_mov_b32 s64, 0xffff0000')
for i in range(4): k('v_mov_b32 v%d, 0'%(56+i))
k('v_lshrrev_b32 v69, 3, v1'); k('v_lshlrev_b32 v69, 3, v69')
k('v_bfe_u32 v72, v1, 2, 2'); k('v_lshrrev_b32 v73, 4, v1'); k('v_lshl_add_u32 v72, v73, 2, v72'); k('v_and_b32 v73, 3, v1')
k('v_mul_u32_u24 v71, 96, v72'); k('v_lshl_add_u32 v71, v73, 3, v71')
k('v_mul_u32_u24 v74, 160, v72'); k('v_lshl_add_u32 v74, v73, 3, v74'); k('v_add_u32 v74, %d, v74'%LST)
WT=OPT.get('wt',0)
def wtouch():
    k('v_min_u32 v6, 59, v1'); k('v_lshlrev_b32 v6, 7, v6'); k('s_mul_i32 s65, s2, 7680')
    k('buffer_load_dword v76, v6, s[52:55], s65 offen'); k('buffer_load_dword v77, v6, s[56:59], s65 offen')
if WT==2: wtouch()
if OPT.get('tl',0)==0: tw_=wd_tiles()
k.need(tq[4])
if OPT.get('tl',0)==1: tw_=wd_tiles()
tdbg=k('buffer_load_dword v70, v69, s[60:63], 0 offen sc1')
k.need(tq[9])
stamp('cv0')
W1D=OPT.get('w1d',2)
for i in range(OPT.get('early',1)): w1_issue()
for t in range(10):
    for j in range(4):
        r=16+4*t+j; T=10 if j&1 else 8
        k('v_lshlrev_b32 v%d, 16, v%d'%(T,r)); k('v_and_b32 v%d, s64, v%d'%(T+1,r))
        k('v_pk_add_f32 v[56:57], v[56:57], %s'%v2(T)); k('v_pk_fma_f32 v[58:59], %s, %s, v[58:59]'%(v2(T),v2(T)))
k('v_add_f32 v56, v56, v57'); k('v_add_f32 v58, v58, v59')
for m in ('quad_perm:[1,0,3,2]','quad_perm:[2,3,0,1]','row_half_mirror'):
    k('v_add_f32_dpp v56, v56, v56 %s row_mask:0xf bank_mask:0xf'%m); k('v_add_f32_dpp v58, v58, v58 %s row_mask:0xf bank_mask:0xf'%m)
k('v_mul_f32 v56, 0x%x, v56'%INV); k('v_mul_f32 v58, 0x%x, v58'%INV)
k('v_fma_f32 v58, -v56, v56, v58'); k('v_max_f32 v58, 0, v58'); k('v_add_f32 v58, 0x%x, v58'%EPS); k('v_rsq_f32 v58, v58')
k('v_lshlrev_b32 v6, 2, v2'); k('v_add_u32 v6, %d, v6'%(LCNT+64))
k('v_mul_f32_e64 v56, -v56, v58')
k('ds_write_b32 v6, v58'); k('ds_write_b32 v6, v56 offset:32')
k('v_and_b32 v6, 3, v1'); k('v_lshlrev_b32 v8, 4, v6'); k('v_add_u32 v8, %d, v8'%(LCNT+64))
t=k('ds_read_b128 v[56:59], v8')
k('v_and_b32 v8, 1, v1'); k('v_lshlrev_b32 v8, 4, v8'); k('v_lshrrev_b32 v6, 1, v6'); k('v_lshl_add_u32 v8, v6, 13, v8')
k('s_lshl_b32 s65, s2, 5'); k('s_add_u32 s65, s65, 0x%x'%QR)
k.need(t)
k('s_mov_b64 exec, 15'); k('buffer_store_dwordx4 v[56:59], v8, %s, s65 offen sc1'%WS); k('s_mov_b64 exec, -1')
k('s_mov_b32 s66, 0x3f803f80')
for i in range(24): k('v_mov_b32 v%d, 0'%(80+i))
for i in range(24): k('v_mov_b32 v%d, 0'%(16+i))
k('s_mov_b32 s67, 0'); k('s_mov_b32 s69, 0'); k('v_mov_b32 v49, 0'); k('v_mov_b32 v48, %d'%(LCNT+C_S1K))
for i in range(4): k('v_mov_b32 v%d, s66'%(12+i))
for i in range(4): k('v_mov_b32 v%d, -1'%(44+i))
k('s_lshl_b32 s65, s2, 10'); k('s_add_u32 s65, s65, 0x%x'%ST1)
tst=('v',k.nv)
k('buffer_store_dwordx4 v[44:47], v7, %s, s65 offen sc1'%WS)
k.need(tw_)
rd={}
for e in range(2):
    for nb in range(5):
        for hh in range(2): rd[e,nb]=k('ds_read_b64_tr_b16 %s, v74 offset:%d'%(v2(104+20*e+4*nb+2*hh),5120*e+2560*hh+32*nb))
for e in range(2):
    for nb in range(5):
        k.need(rd[e,nb])
        if nb==4: k('s_add_u32 s%d, s%d, 4096'%(70+e,70+e))
        tpr=k('buffer_store_dwordx4 %s, v7, %s, s%d offen offset:%d sc1'%(v4(104+20*e+4*nb),WS,70+e,1024*(nb%4)))
for i in range(OPT.get('mid',0)): w1_issue()
stamp('Acomp')
k.need(tst)
k('v_cmp_eq_u32 vcc, 0, v70'); k('s_cbranch_vccz L_dbgok')
sv=(k.nv,k.dv)
poll(['buffer_load_dword v70, v69, s[60:63], 0 offen sc1'],['v_cmp_eq_u32 vcc, 0, v70'])
k.nv,k.dv=sv
k('L_dbgok:')
k('s_lshl_b32 s76, s4, 3'); k('v_readlane_b32 s6, v70, s76')
k('s_add_u32 s78, s6, 1'); k('v_mov_b32 v8, s78'); k('v_mov_b32 v9, 0'); k('v_add_u32 v75, 1, v8')
flag_addr(128); k('s_add_u32 s85, s77, %d'%(512*8))
k('s_mov_b64 exec, 1'); k('buffer_store_dword v8, v9, %s, s77 offen sc1'%WS); k('s_mov_b64 exec, -1')
k.need(tpr)
k('s_mov_b64 exec, 1'); k('buffer_store_dword v75, v9, %s, s85 offen sc1'%WS); k('s_mov_b64 exec, -1')
stamp('Adrain')
if OPT.get('pause',0)==2:
    k('s_cmp_ge_u32 s5, 27'); k('s_cbranch_scc1 L_nops')
    lds_wait(C_MODE,10)
    k('L_nops:')
if OPT.get('pause',0)==1:
    k('s_mul_i32 s76, s5, 3'); k('s_sub_u32 s76, 80, s76'); k('s_max_i32 s76, s76, 0'); k('s_min_u32 s76, s76, 3')
    k('v_mov_b32 v10, %d'%(LCNT+C_GO)); k('s_mov_b32 s79, 0')
    k('L_go:'); k('ds_read_b32 v11, v10'); k('s_waitcnt lgkmcnt(0)'); k('v_cmp_gt_u32 vcc, s76, v11'); k('s_cbranch_vccz L_god')
    k('s_add_u32 s79, s79, 1'); k('s_lshr_b32 s81, s79, 3'); k('s_cmp_lt_u32 s81, s80'); k('s_cbranch_scc1 L_go'); k('s_mov_b32 s80, 0')
    k('L_god:')
stamp('cv9')
for i in range(W1D-min(1,OPT.get('mid',0))): w1_issue()
PREI=NI[0]
IW=OPT.get('iw',1)
k('L_w1:')
k('s_cmp_ge_u32 s67, %d'%(20-PREI)); k('s_cbranch_scc1 L_w1n')
k('s_waitcnt vmcnt(%d)'%(6*(W1D-1)))
if OPT.get('thin',0):
    k('s_cmp_lg_u32 s69, 0'); k('s_cbranch_scc1 L_w1a')
    k('v_readfirstlane_b32 s69, v49'); k('ds_read_b32 v49, v48'); k('s_waitcnt vmcnt(0)')
k('L_w1a:')
w1_issue()
k('s_branch L_w1m')
k('L_w1n:'); k('s_cmp_lt_u32 s67, %d'%(21-W1D)); k('s_cbranch_scc1 L_w1o'); k('s_waitcnt vmcnt(0)'); k('L_w1o:'); k('s_waitcnt vmcnt(%d)'%(6*(W1D-1)))
k('L_w1m:')
if OPT['stamps']>1:
    k('s_memtime s[98:99]'); k('s_waitcnt lgkmcnt(0)'); k('s_add_u32 m0, s67, 42'); k('v_writelane_b32 v0, s98, m0')
k('v_add_u32 v4, s82, v71'); k('v_add_u32 v5, %d, v4'%LWU)
k('s_add_u32 s82, s82, 3072')
k('s_waitcnt lgkmcnt(0)')
for b in range(6):
    k('v_mfma_f32_16x16x32_bf16 %s, %s, v[12:15], %s'%(v4(80+4*b),v4(16+4*b),v4(80+4*b)))
    if b>0:
        for hh in range(2): k('ds_read_b64_tr_b16 %s, v%d offset:%d'%(v2(16+4*(b-1)+2*hh),4+((b-1)&1),1536*hh+32*((b-1)>>1)))
k('s_nop 3')
for hh in range(2): k('ds_read_b64_tr_b16 %s, v5 offset:%d'%(v2(36+2*hh),1536*hh+64))
k('s_add_u32 s67, s67, 1'); k('s_cmp_lt_u32 s67, 20'); k('s_cbranch_scc1 L_w1')
k('s_waitcnt lgkmcnt(0)')
for b in range(6): k('v_mfma_f32_16x16x32_bf16 %s, %s, v[12:15], %s'%(v4(80+4*b),v4(16+4*b),v4(80+4*b)))
stamp('conv')
k.srd(52,38,256)
poll(pub_loads(40,41,35,2),pub_chk(41,35))
lds_set(C_G0,'1',44)
k('v_add_u32 v35, 1, v35')
if OPT.get('wdt',0):
    k('v_lshlrev_b32 v27, 7, v1'); k('s_mul_i32 s76, s5, 61440'); k('s_add_u32 s76, s76, 0x%x'%WDF)
    for i in range(8):
        if i==7: k('s_mov_b32 exec_hi, 0')
        k('buffer_load_dword v36, v27, %s, s76 offen sc1'%WS); k('s_add_u32 s76, s76, 8192')
        if i&1: k('s_waitcnt vmcnt(%d)'%OPT.get('wdtd',1))
    k('s_mov_b64 exec, -1')
k('v_lshrrev_b32 v6, 4, v1'); k('v_lshlrev_b32 v6, 4, v6'); k('s_lshl_b32 s65, s2, 9'); k('s_add_u32 s65, s65, 0x%x'%CS)
k('s_mov_b32 s66, 0x00010001'); k('s_nop 7'); k('s_mov_b32 exec_lo, s66'); k('s_mov_b32 exec_hi, s66')
for b in range(6): k('buffer_store_dwordx4 %s, v6, %s, s65 offen offset:%d'%(v4(80+4*b),WS,64*b))
k('s_mov_b64 exec, -1')
mode_wait(8)
if OPT.get('pt',1):
    k('s_cmp_lg_u32 s12, 1'); k('s_cbranch_scc1 L_nopt')
    k('s_lshl_b32 s76, s4, 2'); k('s_lshr_b32 s77, s5, 3'); k('s_add_u32 s76, s76, s77'); k('s_mul_i32 s76, s76, 81920')
    k('s_and_b32 s77, s5, 7'); k('s_mul_i32 s77, s77, 10240'); k('s_add_u32 s76, s76, s77'); k('s_add_u32 s76, s76, %d'%X3)
    k('v_lshlrev_b32 v27, 7, v1'); k('buffer_load_dword v36, v27, %s, s76 offen sc1'%WS)
    k('v_and_b32 v27, 15, v1'); k('v_lshlrev_b32 v27, 7, v27'); k('s_add_u32 s76, s76, 8192'); k('buffer_load_dword v36, v27, %s, s76 offen sc1'%WS)
    k('L_nopt:')
wdf_base()
if OPT.get('gate',1)>1:
    k('s_cmp_ge_u32 s5, 27'); k('s_cbranch_scc1 L_ngate')
    lds_wait(C_GO,10)
    k('L_ngate:')
stamp('convdr')
k('s_branch L_wdall2')

k('L_pre:')
k.reset_counts()
k('s_cmp_eq_u32 s13, 0'); k('s_cbranch_scc1 L_pre0')
if OPT.get('look2',0): look_issue(36)
k('s_waitcnt vmcnt(0) lgkmcnt(0)'); k('s_barrier')
k('s_cmp_lg_u32 s3, 0'); k('s_cbranch_scc1 L_pre0')
island_flag_store('5',32)
k('L_pre0:')
ACC=32; XS=[128,144]; WF=160; SA=184; ONE=188; STL=192; CSR=224
k('s_lshl_b32 s64, s3, 13'); k('s_add_u32 s64, s64, %d'%LR)
k('v_lshrrev_b32 v12, 3, v1'); k('v_bfe_u32 v13, v12, 1, 2'); k('v_lshlrev_b32 v13, 1, v13'); k('v_and_b32 v14, 7, v1'); k('v_xor_b32 v13, v14, v13')
k('v_lshlrev_b32 v13, 4, v13'); k('v_lshl_add_u32 v2, v12, 7, v13')
k('v_xor_b32 v13, v14, v12'); k('v_lshlrev_b32 v13, 4, v13'); k('v_lshl_add_u32 v3, v12, 7, v13')
k('s_lshl_b32 s65, s4, 2'); k('s_add_u32 s65, s65, s3'); k('s_mul_i32 s65, s65, 81920'); k('s_add_u32 s65, s65, s14')
k('s_lshr_b32 s66, s5, 3')
for i in range(4):
    k('s_add_u32 s72, s66, %d'%i); k('s_and_b32 s72, s72, 3'); k('s_mul_i32 s72, s72, 20480'); k('s_add_u32 s%d, s72, s65'%(67+i))
k('v_bfe_u32 v10, v1, 2, 2'); k('v_lshrrev_b32 v11, 4, v1'); k('v_lshl_add_u32 v10, v11, 2, v10'); k('v_and_b32 v11, 3, v1')
k('v_mul_u32_u24 v8, 96, v10'); k('v_lshl_add_u32 v8, v11, 3, v8')
k('s_and_b32 s72, s5, 1'); k('s_lshl_b32 s73, s72, 5'); k('s_xor_b32 s72, s72, 1'); k('s_lshl_b32 s72, s72, 6')
k('v_add_u32 v9, s72, v8'); k('v_add_u32 v8, s73, v8')
for i in range(4):
    k('s_add_u32 s72, s66, %d'%i); k('s_and_b32 s72, s72, 3'); k('s_mul_i32 s%d, s72, 15360'%(82+i))
k('v_add_u32 v22, %d, v8'%LWU); k('v_add_u32 v23, %d, v9'%LWU)
def wbases(it):
    r=(16,28)[it&1]
    return ['v_add_u32 v%d, s%d, v%d'%(r+j,82+it,(8,9,22,23)[j]) for j in range(4)]
K_(['s_lshl_b32 s74, s4, 4','s_lshl_b32 s75, s3, 2','s_add_u32 s74, s74, s75','s_mul_i32 s73, s74, 49152','s_lshl_b32 s74, s74, 9','s_add_u32 s74, s74, s42',
    's_lshr_b32 s72, s5, 1','s_mul_i32 s72, s72, 3072','s_add_u32 s73, s73, s72','s_add_u32 s73, s73, s15','s_and_b32 s75, s5, 3'])
for q in range(4):
    K_(['s_xor_b32 s76, s75, %d'%q,'s_lshl_b32 s72, s76, 9','s_add_u32 s%d, s72, s74'%(45+q),'s_mul_i32 s76, s76, 49152','s_add_u32 s%d, s76, s73'%(52+q)])
K_(['s_bfe_u32 s77, s5, 0x10002','s_lshl_b32 s77, s77, 4','s_add_u32 s44, s45, s77','s_lshl_b32 s77, s66, 2','s_add_u32 s44, s44, s77',
    'v_and_b32 v24, 15, v1','v_lshlrev_b32 v24, 5, v24','v_lshrrev_b32 v26, 4, v1','v_lshlrev_b32 v26, 4, v26',
    's_lshl_b32 s76, s2, 9','s_add_u32 s76, s76, 0x%x'%CS,'s_and_b32 s77, s5, 1','s_lshl_b32 s56, s77, 11','s_lshl_b32 s78, s77, 7','s_add_u32 s49, s78, s76',
    's_lshl_b32 s78, s77, 3','v_lshl_add_u32 v21, v1, 4, s78','v_lshlrev_b32 v20, 4, v1',
    's_xor_b32 s77, s77, 1','s_lshl_b32 s77, s77, 8','s_add_u32 s50, s77, s76',
    's_lshl_b32 s76, s4, 2','s_add_u32 s76, s76, s66','s_mul_i32 s76, s76, 81920','s_and_b32 s77, s5, 7','s_mul_i32 s77, s77, 10240','s_add_u32 s43, s76, s77',
    's_bitcmp1_b32 s3, 1','s_cselect_b32 s76, 0x%x, s14'%YB,'s_add_u32 s76, s76, s43','s_and_b32 s77, s3, 1','s_mul_i32 s77, s77, 5120','s_add_u32 s51, s76, s77',
    's_mov_b32 s86, 0x22222222','s_mov_b32 s87, s86','s_mov_b32 s88, 0x44444444','s_mov_b32 s89, s88','s_mov_b32 s90, 0x88888888','s_mov_b32 s91, s90'])
K_(['v_lshrrev_b32 v27, 4, v1','s_mov_b32 s76, 49152','v_mul_lo_u32 v27, v27, s76','v_and_b32 v12, 7, v1','v_lshl_add_u32 v27, v12, 7, v27',
    'v_bfe_u32 v12, v1, 3, 1','s_sub_u32 s76, s56, 1024','v_mul_lo_u32 v12, v12, s76','v_add3_u32 v27, v27, v12, s73'])
k('v_bfe_u32 v12, v10, 1, 2'); k('s_and_b32 s72, s5, 3'); k('v_xor_b32 v12, s72, v12'); k('v_lshlrev_b32 v12, 1, v12')
k('v_lshrrev_b32 v13, 1, v11'); k('v_and_b32 v14, 1, v11'); k('v_lshlrev_b32 v14, 3, v14'); k('v_lshl_add_u32 v14, v10, 7, v14'); k('v_add_u32 v14, s64, v14')
for q in range(4):
    k('v_add_u32 v15, %d, v13'%(2*q)); k('v_xor_b32 v15, v15, v12'); k('v_lshl_add_u32 v%d, v15, 4, v14'%(4+q))
k('s_mov_b32 s72, 0x3f803f80')
for i in range(4): k('v_mov_b32 v%d, s72'%(ONE+i))
def dma_pre(ks): return ['s_add_u32 m0, s64, %d'%((ks&1)*4096),'s_add_u32 s71, s%d, %d'%(67+ks//5,(ks%5)*4096)]
def dma(t): return 'buffer_load_dwordx4 v2, %s, s71 offen offset:%d%s lds'%(WS,1024*t,LP)
K_(wbases(0)); K_(dma_pre(0))
k('s_cmp_eq_u32 s13, 1'); k('s_cbranch_scc1 L_s6')
k('s_cmp_lg_u32 s3, 3'); k('s_cbranch_scc1 L_s2b')
k('v_and_b32 v32, 7, v1'); k('v_lshlrev_b32 v32, 2, v32'); k('s_lshl_b32 s77, s4, 9'); k('s_add_u32 s77, s77, 0x%x'%(FLG+256))
poll(['buffer_load_dword v33, v32, %s, s77 offen sc1'%WS], ['v_cmp_ne_u32 vcc, v35, v33'])
k('s_branch L_s2b')
k('L_s6:')
k('s_cmp_lg_u32 s3, 0'); k('s_cbranch_scc1 L_s2b')
if OPT.get('look2',0): look_skip('5',36,'L_s2b')
island_poll('5',32)
k('L_s2b:')
k('s_waitcnt vmcnt(0) lgkmcnt(0)')
k('s_barrier')
stamp('G1in',True)
if OPT['stop']<=1: k('s_branch L_fin')

T={}
for t in range(4): T['d',0]=k(dma(t))
K_(dma_pre(1))
for t in range(4): T['d',1]=k(dma(t))
def wr(ks,b):
    p=b>>1; gu=b&1
    base=(16,28)[(ks//5)&1]+2*gu+(1 if p==2 else 0); off=(ks%5)*3072+(32*p if p<2 else 0)
    return ['ds_read_b64_tr_b16 %s, v%d offset:%d'%(v2(WF+4*b+2*hh),base,off+1536*hh) for hh in range(2)]
for b in range(5):
    for x in wr(0,b): T['w',0,b]=k(x)
K_(dma_pre(2))
def xr(ks,q): return ['ds_read_b64_tr_b16 %s, v%d offset:%d'%(v2(XS[ks&1]+4*q+2*hh),4+q,(ks&1)*4096+2048*hh) for hh in range(2)]
k.need(T['d',0])
for q in range(4):
    for x in xr(0,q): T['x',0]=k(x)
stamp('G1pro',True)
def st_loads():
    o=[]
    for q in range(4):
        o+=['buffer_load_dwordx4 %s, v24, %s, s%d offen sc1'%(v4(STL+8*q),WS,45+q),'buffer_load_dwordx4 %s, v24, %s, s%d offen offset:16 sc1'%(v4(STL+8*q+4),WS,45+q)]
    return o
def publish_stats():
    o=[S('v_cndmask_b32 v25, v%d, v%d, s[%d:%d]'%(SA if r==1 else 25,SA+r,84+2*r,85+2*r)) for r in (1,2,3)]
    def st():
        k('s_mov_b32 exec_lo, 0x00f0000f'); k('s_mov_b32 exec_hi, 0xf0000f00')
        hstore(['buffer_store_dword v25, v24, %s, s44 offen'%WS])
        k('s_mov_b64 exec, -1')
    return o+[st]
cs_l=['buffer_load_dwordx4 %s, v26, %s, %s offen offset:%d'%(v4(CSR+4*b),WS,'s49' if b<4 else 's50',64*(b%4)) for b in range(6)]
chk=['v_max3_u32 v25, v%d, v%d, v%d'%(STL,STL+1,STL+2)]
for i in range(3,31,2): chk.append('v_max3_u32 v25, v25, v%d, v%d'%(STL+i,STL+i+1))
chk+=['v_max_u32 v25, v25, v%d'%(STL+31),'v_cmp_eq_u32 vcc, -1, v25']
CA=-2*0.7978845608028654*1.4426950408889634
PQs=[184,188,248,252]
def st_check():
    k(chk[-1]); k('s_cbranch_vccz L_stok')
    sv=(k.nv,k.dv); poll(st_loads(),chk); k.nv,k.dv=sv
    k('L_stok:')
stc=[]
for j in (1,2,3):
    for q in range(4): stc+=['v_add_f32 v%d, v%d, v%d'%(STL+8*q,STL+8*q,STL+8*q+j),'v_add_f32 v%d, v%d, v%d'%(STL+8*q+4,STL+8*q+4,STL+8*q+4+j)]
for q in range(4): stc+=['v_mul_f32 v%d, 0x%x, v%d'%(PQs[q],INV^0x80000000,STL+8*q+4),'v_mul_f32 v%d, 0x%x, v%d'%(STL+8*q,INV,STL+8*q)]
for q in range(4): stc+=['v_fma_f32 v%d, -v%d, v%d, v%d'%(STL+8*q,PQs[q],PQs[q],STL+8*q)]
for q in range(4): stc+=['v_max_f32 v%d, 0, v%d'%(STL+8*q,STL+8*q)]
for q in range(4): stc+=['v_add_f32 v%d, 0x%x, v%d'%(PQs[q]+1,EPS,STL+8*q)]
for q in range(4): stc+=['v_rsq_f32 v%d, v%d'%(STL+8*q,PQs[q]+1)]
for q in range(4): stc+=['v_mul_f32 v%d, 0x%x, v%d'%(PQs[q]+2,fb(CA),STL+8*q),'v_mul_f32 v%d, v%d, v%d'%(STL+8*q+1,STL+8*q,STL+8*q)]
for q in range(4): stc+=['v_mul_f32 v%d, 0x%x, v%d'%(STL+8*q+1,fb(0.044715),STL+8*q+1)]
for q in range(4): stc+=['v_mul_f32 v%d, v%d, v%d'%(PQs[q]+3,PQs[q]+2,STL+8*q+1)]
late=[S(x) for x in chk[:-1]]+[st_check]+[S(x) for x in stc]
def touch():
    l=k.lab('Ltc'); k('s_cmp_lg_u32 s12, 1'); k('s_cbranch_scc1 %s'%l); k('s_cmp_lg_u32 s13, 0'); k('s_cbranch_scc1 %s'%l)
    nv=k.nv
    if OPT.get('touch',1)&1: k('s_mov_b32 s76, 1024'); k('buffer_load_dword v19, v27, %s, s76 offen sc1'%WS)
    k('v_min_u32 v8, 19, v1'); k('s_mul_i32 s76, s3, 2560'); k('v_lshlrev_b32 v8, 7, v8'); k('s_add_u32 s76, s76, s43'); k('s_add_u32 s76, s76, %d'%X3)
    if OPT.get('touch',1)&2: k('buffer_load_dword v19, v8, %s, s76 offen sc1'%WS)
    k.nv=nv
    k(l+':')
extra={5:publish_stats(),10:[S(x) for x in cs_l],13:[S(x) for x in st_loads()[:4]],14:[S(x) for x in st_loads()[4:]]}
for ks in range(20):
    gaps=[[] for _ in range(24)]
    def put(g,key,x): gaps[g].append((key,x))
    for hh in range(2): put(hh,('w',ks,5),wr(ks,5)[hh])
    if ks+2<20:
        for t,g in enumerate((2,3,6,7)): put(g,('d',ks+2),dma(t))
    if ks+3<20:
        for x,g in zip(dma_pre(ks+3),(22,23)): put(g,None,x)
    if ks+1<20:
        for b in range(5):
            for hh in range(2): put(4*b+4+hh,('w',ks+1,b),wr(ks+1,b)[hh])
        for i in range(8): put(10+i,('x',ks+1,i),xr(ks+1,i>>1)[i&1])
    if ks==18:
        put(22,None,'s_mov_b32 m0, s64')
        if OPT.get('touch',1): put(11,'f',touch)
    if ks==19:
        for t in range(4): put(2+2*t,None,'buffer_load_dwordx4 v3, %s, s51 offen offset:%d sc1 lds'%(WS,1024*t))
        put(9,None,'s_add_u32 m0, s64, 4096'); put(10,None,'s_add_u32 s76, s51, 4096'); put(11,None,'buffer_load_dwordx4 v3, %s, s76 offen sc1 lds'%WS)
    if ks>=16:
        slots={16:[18,19,20,21,22,23],17:[0,1,4,5,8,9,18,18,19,19,20,21,22,22,23,23],18:[0,1,2,2,3,3,4,5,6,6,7,7,8,9,18,18,19,19,20,21,22,23,23],
               19:[g for g in range(24) for _ in range(2)]}[ks]
        for g in slots:
            if late: put(g,'f',late.pop(0))
    ex=list(extra.get(ks,[]))
    if ks%5==2 and ks<15: ex+=[S(x) for x in wbases(ks//5+1)]
    free=[18,19,22,23,4,5,8,9,20,21,2,3,6,7,0,1]
    for g,f in zip(sorted(free[:max(len(ex),1)]),ex): put(g,'f',f)
    i=0
    for b in range(6):
        for q in (range(4) if (b&1)==0 else range(3,-1,-1)):
            if i==0: k.need(T['x',ks],T['w',ks,0],T['w',ks,3])
            if i==16: k.need(T['w',ks,4],T['w',ks,5])
            acc=ACC+4*(6*q+b)
            k('v_mfma_f32_16x16x32_bf16 %s, %s, %s, %s'%(v4(acc),v4(WF+4*b),v4(XS[ks&1]+4*q),'0' if ks==0 else v4(acc)))
            if ks<5 and i==19:
                l1=k.lab('Lsq'); l2=k.lab('Lsd'); cc='0' if ks==0 else v4(SA); X0=XS[ks&1]
                k('s_bitcmp1_b32 s5, 2'); k('s_cbranch_scc0 %s'%l1)
                k('v_mfma_f32_16x16x32_bf16 %s, %s, %s, %s'%(v4(SA),v4(ONE),v4(X0),cc)); k('s_branch %s'%l2)
                k(l1+':'); k('v_mfma_f32_16x16x32_bf16 %s, %s, %s, %s'%(v4(SA),v4(X0),v4(X0),cc)); k(l2+':')
            for key,x in gaps[i]:
                if key=='f': x(); continue
                if key and key[0]=='x' and key[2]==0: k.need(T['d',ks+1])
                t=k(x)
                if key and t: T[key[:2] if key[0]=='x' else key]=t
            i+=1
    if ks==4: stamp('G1i0',True)
stamp('G1',True)
assert not late
k('v_mov_b32 v2, v20')
TMP=144
for q in range(4):
    p=PQs[q]; o=STL+8*(q&1)
    items=[(pp,h2) for pp in range(3) for h2 in range(2)]
    G=lambda pp,h2: ACC+4*(6*q+2*pp)+2*h2
    U=lambda pp,h2: ACC+4*(6*q+2*pp+1)+2*h2
    t=lambda i: TMP+2*i
    for i,(pp,h2) in enumerate(items): k('v_pk_fma_f32 %s, %s, %s, %s op_sel_hi:[0,1,1]'%(v2(G(pp,h2)),v2(p),v2(CSR+8*pp+2*h2),v2(G(pp,h2))))
    for i,(pp,h2) in enumerate(items): k('v_pk_mul_f32 %s, %s, %s'%(v2(t(i)),v2(G(pp,h2)),v2(G(pp,h2))))
    for i,(pp,h2) in enumerate(items): k('v_pk_fma_f32 %s, %s, %s, %s op_sel:[0,1,0] op_sel_hi:[1,1,0]'%(v2(t(i)),v2(t(i)),v2(p+2),v2(p+2)))
    for i,(pp,h2) in enumerate(items): k('v_pk_mul_f32 %s, %s, %s'%(v2(t(i)),v2(t(i)),v2(G(pp,h2))))
    for i,(pp,h2) in enumerate(items):
        k('v_exp_f32 v%d, v%d'%(t(i),t(i))); k('v_exp_f32 v%d, v%d'%(t(i)+1,t(i)+1))
        k('v_pk_fma_f32 %s, %s, %s, %s op_sel_hi:[0,1,1]'%(v2(U(pp,h2)),v2(p),v2(CSR+8*pp+4+2*h2),v2(U(pp,h2))))
    for i,(pp,h2) in enumerate(items): k('v_pk_fma_f32 %s, %s, %s, %s op_sel:[0,1,1] op_sel_hi:[1,1,1]'%(v2(t(i)),v2(t(i)),v2(p),v2(p)))
    for i,(pp,h2) in enumerate(items):
        k('v_rcp_f32 v%d, v%d'%(t(i),t(i))); k('v_rcp_f32 v%d, v%d'%(t(i)+1,t(i)+1))
        k('v_pk_mul_f32 %s, %s, %s'%(v2(G(pp,h2)),v2(G(pp,h2)),v2(U(pp,h2))))
    for i,(pp,h2) in enumerate(items): k('v_pk_mul_f32 %s, %s, %s'%(v2(G(pp,h2)),v2(G(pp,h2)),v2(t(i))))
    for i,(pp,h2) in enumerate(items): k('v_cvt_pk_bf16_f32 v%d, v%d, v%d'%(o+i,G(pp,h2),G(pp,h2)+1))
    k('s_add_u32 s78, s%d, s56'%(52+q))
    hstore(['buffer_store_dwordx4 %s, v2, %s, s78 offen'%(v4(o),WS),'buffer_store_dwordx2 %s, v21, %s, s%d offen offset:1024'%(v2(o+4),WS,52+q)])
stamp('G1epi',True)
A2=16; HF=96; NFR=24; P1=192; P2=212; RES=232; YY=242; P3=192
k('s_lshl_b32 s64, s4, 2'); k('s_lshr_b32 s65, s5, 3'); k('s_add_u32 s64, s64, s65')
k('s_and_b32 s69, s5, 7')
k('s_mul_i32 s66, s64, %d'%(4*49152)); k('s_mul_i32 s67, s3, 12288'); k('s_add_u32 s66, s66, s67'); k('s_add_u32 s66, s66, s15')
for sl in range(3):
    k('s_add_u32 s71, s3, %d'%(sl+1)); k('s_and_b32 s71, s71, 3'); k('s_mul_i32 s%d, s71, 49152'%(60+sl)); k('s_add_u32 s%d, s%d, s66'%(60+sl,60+sl))
    k('s_mul_i32 s71, s71, 5120'); k('s_add_u32 s71, s71, %d'%(LR+(20480 if sl==1 else 0))); k('v_add_u32 v%d, s71, v2'%(4+sl))
k('s_mul_i32 s63, s3, 49152'); k('s_add_u32 s63, s63, s66')
k('s_mul_i32 s71, s3, 5120'); k('s_add_u32 s71, s71, %d'%LR); k('v_add_u32 v7, s71, v2')
k('v_and_b32 v8, 15, v1'); k('v_lshrrev_b32 v9, 4, v1')
k('v_lshrrev_b32 v10, 1, v9'); k('s_lshl_b32 s71, s3, 1'); k('v_add_u32 v10, s71, v10'); k('v_and_b32 v11, 7, v8'); k('v_xor_b32 v10, v10, v11')
k('v_lshlrev_b32 v10, 4, v10'); k('v_and_b32 v11, 1, v9'); k('v_lshl_add_u32 v10, v11, 3, v10'); k('v_lshl_add_u32 v10, v8, 7, v10'); k('v_add_u32 v14, %d, v10'%LR)
k('v_bfe_u32 v11, v8, 3, 1'); k('v_mul_u32_u24 v11, 3072, v11'); k('v_add_u32 v15, v14, v11')
k('s_lshl_b32 s70, s64, 2'); k('s_add_u32 s70, s70, s3'); k('s_lshl_b32 s70, s70, 10'); k('s_add_u32 s70, s70, 0x%x'%EX)
k('s_lshl_b32 s72, s69, 5'); k('s_add_u32 s72, s72, s70')
k('v_bfe_u32 v252, v1, 2, 2'); k('v_lshlrev_b32 v252, 3, v252'); k('v_lshl_add_u32 v252, v9, 8, v252')
k('v_and_b32 v253, 7, v1'); k('v_lshlrev_b32 v253, 5, v253'); k('v_bfe_u32 v11, v1, 3, 1'); k('v_lshl_add_u32 v253, v11, 4, v253'); k('v_lshl_add_u32 v253, v9, 8, v253')
k('s_mul_i32 s67, s3, 5120'); k('s_add_u32 s67, s67, %d'%(LR+20480))
k('v_lshlrev_b32 v254, 5, v8'); k('v_lshl_add_u32 v254, v9, 3, v254'); k('v_add_u32 v254, s67, v254')
k('v_bfe_u32 v255, v1, 2, 2'); k('v_and_b32 v12, 3, v1'); k('v_lshl_add_u32 v255, v9, 3, v255'); k('v_lshlrev_b32 v255, 5, v255'); k('v_lshl_add_u32 v255, v12, 3, v255'); k('v_add_u32 v255, s67, v255')
k('s_mov_b32 s71, 0xffff0000')
if OPT.get('look2',0): look_issue(22)
k('s_waitcnt vmcnt(0) lgkmcnt(0)'); k('s_barrier')
for which,dst in ((0,RES),(1,YY)):
    for nb in range(5):
        k('ds_read_b64 %s, v%d offset:%d'%(v2(dst+2*nb),15 if nb==2 else 14,16384*which+2048*nb+(3072 if nb>2 else 0)))
k('s_cmp_lg_u32 s3, 0'); k('s_cbranch_scc1 L_s4b')
k('s_lshl_b32 s68, s13, 1'); k('s_add_u32 s68, s68, 4')
island_flag_store('s68',16)
if OPT.get('look2',0): look_skip('s68',22,'L_s4b')
island_poll('s68',16)
k('L_s4b:')

k('s_waitcnt lgkmcnt(0)'); k('s_barrier')
stamp('S4',True)
if OPT['stop']<=2: k('s_branch L_fin')

k.reset_counts()
LOOK=OPT.get('look',8)
TH={}
def hload(n):
    sl,i=divmod(n,12)
    if i%4==0 and i: k('s_add_u32 s%d, s%d, 4096'%(60+sl,60+sl))
    TH[n]=k('buffer_load_dwordx4 %s, v2, %s, s%d offen offset:%d sc1'%(v4(HF+4*(n%NFR)),WS,60+sl,1024*(i%4)))
for n in range(LOOK): hload(n)
def run(sl,fill,cin=None,start=2):
    i=0
    for kap in range(12):
        n=12*sl+kap
        for nb in range(5):
            acc=A2+20*sl+4*nb
            c=v4(acc) if kap else ('0' if cin is None else v4(cin+4*nb))
            k.need(TH[n])
            k('v_mfma_f32_16x16x32_bf16 %s, %s, %s, %s'%(v4(acc),v4(HF+4*(n%NFR)),a4(4*(5*kap+nb)),c))
            if nb==0 and n+LOOK<48: hload(n+LOOK)
            elif i>=start and fill: fill.pop(0)()
            i+=1
    for f in fill: f()
def wr_acc(sl): return [S('ds_write_b128 v%d, %s offset:%d'%(4+sl,v4(A2+20*sl+4*nb),1024*nb)) for nb in range(5)]
def rd_part(dst,off,key):
    o=[]
    for nb in range(5):
        def f(nb=nb): TH[key]=k('ds_read_b128 %s, v7 offset:%d'%(v4(dst+4*nb),off+1024*nb))
        o.append(f)
    return o
nop=lambda: None
def spaced(fs,n):
    o=[]
    for f in fs: o+=[f]+[nop]*n
    return o
stamp('G2pro',True)
run(0,[])
stamp('G2s0',True)
run(1,spaced(wr_acc(0),3),start=5)
k('s_waitcnt lgkmcnt(0)'); k('s_barrier')
stamp('G2s1',True)
f=[]
for nb in range(5):
    for h2 in range(2):
        r=RES+2*nb+h2; p=P1+4*nb+2*h2
        def f1(p=p):
            k.need(TH['p1']); k('v_add_f32 v%d, v%d, v10'%(p,p))
        f+=[S('v_lshlrev_b32 v10, 16, v%d'%r),S('v_and_b32 v11, s71, v%d'%r),f1,S('v_add_f32 v%d, v%d, v11'%(p+1,p+1))]
w=wr_acc(1); g=rd_part(P1,0,'p1')
for i in range(5):
    g+=[w[i]]+[(lambda a=f[8*i+2*j],b=f[8*i+2*j+1]: (a(),b())) for j in range(4)]
run(2,g,start=0)
k('s_waitcnt lgkmcnt(0)'); k('s_barrier')
stamp('G2s2',True)
def b3(): k('s_waitcnt lgkmcnt(0)'); k('s_barrier')
P3=96
def touch3():
    l=k.lab('Ltc'); k('s_cmp_lg_u32 s12, 1'); k('s_cbranch_scc1 %s'%l); k('s_cmp_lg_u32 s13, 0'); k('s_cbranch_scc1 %s'%l)
    nv=k.nv
    k('v_min_u32 v12, 19, v1'); k('s_mul_i32 s76, s3, 2560'); k('v_lshlrev_b32 v12, 7, v12'); k('s_add_u32 s76, s76, s43'); k('s_add_u32 s76, s76, %d'%X3)
    k('buffer_load_dword v13, v12, %s, s76 offen sc1'%WS)
    k.nv=nv
    k(l+':')
f=rd_part(P2,20480,'p2')+spaced(wr_acc(2),2)+[nop]*4+[b3]+rd_part(P3,0,'p3')+[nop]*3
for j in range(10):
    def f2(j=j):
        k.need(TH['p3']); k('v_add_f32 v%d, v%d, v%d'%(P2+2*j,P2+2*j,P3+2*j)); k('v_add_f32 v%d, v%d, v%d'%(P2+2*j+1,P2+2*j+1,P3+2*j+1))
    f.append(f2)
YF=116
yu=[]
for j in range(10): yu.append(lambda j=j: (k('v_lshlrev_b32 v%d, 16, v%d'%(YF+2*j,YY+j)),k('v_and_b32 v%d, s71, v%d'%(YF+2*j+1,YY+j))))
f=[(yu.pop(0) if (x is nop and yu) else x) for x in f]
assert not yu
oa=[]
for t in range(3):
    oa+=[lambda t=t: (k('v_add_u32 v%d, %d, v1'%(140+t,64*t)),k('v_mul_u32_u24 v%d, 6554, v%d'%(136+t,140+t))),
         lambda t=t: (k('v_lshrrev_b32 v%d, 16, v%d'%(136+t,136+t)),k('v_mul_u32_u24 v139, 10, v%d'%(136+t))),
         lambda t=t: (k('v_sub_u32 v%d, v%d, v139'%(140+t,140+t)),k('v_lshlrev_b32 v%d, 4, v%d'%(140+t,140+t)))]
f=[(oa.pop(0) if (x is nop and oa) else x) for x in f]+oa
run(3,f,cin=P1,start=0)
V=A2+60
for nb in range(5):
    for h2 in range(2): k('v_pk_add_f32 %s, %s, %s'%(v2(V+4*nb+2*h2),v2(V+4*nb+2*h2),v2(P2+4*nb+2*h2)))
stamp('G2',True)
k('s_cmp_eq_u32 s13, 1'); k('s_cbranch_scc1 L_out')
SS=16
for h2 in range(2):
    k('v_pk_add_f32 %s, %s, %s'%(v2(SS+2*h2),v2(V+2*h2),v2(V+4+2*h2))); k('v_pk_mul_f32 %s, %s, %s'%(v2(SS+4+2*h2),v2(V+2*h2),v2(V+2*h2)))
for nb in range(1,5):
    for h2 in range(2):
        if nb>1: k('v_pk_add_f32 %s, %s, %s'%(v2(SS+2*h2),v2(SS+2*h2),v2(V+4*nb+2*h2)))
        k('v_pk_fma_f32 %s, %s, %s, %s'%(v2(SS+4+2*h2),v2(V+4*nb+2*h2),v2(V+4*nb+2*h2),v2(SS+4+2*h2)))
D_='row_mask:0xf bank_mask:0x%x'
for i in range(4):
    k('v_add_f32_dpp v%d, v%d, v%d row_ror:8 %s'%(SS+i,SS+i,SS+i,D_%0x3))
for i in range(4): k('v_add_f32_dpp v%d, v%d, v%d row_ror:8 %s'%(SS+i,SS+4+i,SS+4+i,D_%0xc))
for i in range(2):
    k('v_add_f32_dpp v%d, v%d, v%d row_half_mirror %s'%(SS+i,SS+i,SS+i,D_%0x5))
for i in range(2): k('v_add_f32_dpp v%d, v%d, v%d row_half_mirror %s'%(SS+i,SS+2+i,SS+2+i,D_%0xa))
for i in range(2): k('v_add_f32_dpp v%d, v%d, v%d quad_perm:[1,0,3,2] %s'%(SS+i,SS+i,SS+i,D_%0xf))
for i in range(2): k('v_add_f32_dpp v%d, v%d, v%d quad_perm:[2,3,0,1] %s'%(SS+i,SS+i,SS+i,D_%0xf))
k('s_mov_b32 s73, 0x11111111'); k('s_mov_b32 exec_lo, s73'); k('s_mov_b32 exec_hi, s73')
hstore(['buffer_store_dwordx2 %s, v252, %s, s72 offen'%(v2(SS),WS)])
k('s_mov_b64 exec, -1')
poll(['buffer_load_dwordx4 v[24:27], v253, %s, s70 offen sc1'%WS],['v_max_u32 v12, v24, v25','v_max3_u32 v12, v12, v26, v27','v_cmp_eq_u32 vcc, -1, v12'])
for m in ('quad_perm:[1,0,3,2]','quad_perm:[2,3,0,1]','row_half_mirror'):
    for i in range(4): k('v_add_f32_dpp v%d, v%d, v%d %s row_mask:0xf bank_mask:0xf'%(24+i,24+i,24+i,m))
k('s_mov_b32 vcc_lo, 0x00ff00ff'); k('s_mov_b32 vcc_hi, 0x00ff00ff')
for i in range(4): k('v_mov_b32_dpp v%d, v%d row_ror:8 row_mask:0xf bank_mask:0xf'%(28+i,24+i))
for i in range(4): k('v_cndmask_b32 v%d, v%d, v%d, vcc'%(SS+i,28+i,24+i))
for i in range(4): k('v_cndmask_b32 v%d, v%d, v%d, vcc'%(SS+4+i,24+i,28+i))
k('s_mov_b32 s74, 0x%x'%INV); k('s_mov_b32 s75, s74')
for i in range(4): k('v_pk_mul_f32 %s, %s, s[74:75]'%(v2(SS+2*i),v2(SS+2*i)))
for i in range(4): k('v_fma_f32 v%d, -v%d, v%d, v%d'%(SS+4+i,SS+i,SS+i,SS+4+i))
for i in range(4): k('v_max_f32 v%d, 0, v%d'%(SS+4+i,SS+4+i))
for i in range(4): k('v_add_f32 v%d, 0x%x, v%d'%(SS+4+i,EPS,SS+4+i))
for i in range(4): k('v_rsq_f32 v%d, v%d'%(SS+4+i,SS+4+i))
for i in range(4): k('v_mul_f32_e64 v%d, -v%d, v%d'%(SS+i,SS+i,SS+4+i))
for nb in range(5):
    for h2 in range(2): k('v_pk_fma_f32 %s, %s, %s, %s'%(v2(52+4*nb+2*h2),v2(V+4*nb+2*h2),v2(SS+4+2*h2),v2(SS+2*h2)))
for nb in range(5):
    for h2 in range(2): k('v_pk_fma_f32 %s, %s, %s, %s'%(v2(V+4*nb+2*h2),v2(52+4*nb+2*h2),v2(YF+4*nb+2*h2),v2(V+4*nb+2*h2)))
    for h2 in range(2): k('v_cvt_pk_bf16_f32 v%d, v%d, v%d'%(52+2*nb+h2,V+4*nb+2*h2,V+4*nb+2*h2+1))
    k('ds_write_b64 v14, %s offset:%d'%(v2(52+2*nb),20480+2048*nb))
k('s_lshl_b32 s70, s3, 10'); k('s_add_u32 s72, s70, %d'%(LR+20480)); k('v_add_u32 v10, s72, v2')
k('s_add_u32 s70, s70, s43'); k('s_add_u32 s70, s70, %d'%X3); k('s_add_u32 s72, s70, 4096'); k('s_add_u32 s73, s70, 8192')
k('s_waitcnt lgkmcnt(0)'); k('s_barrier')
for t in range(3): k('ds_read_b128 %s, v10 offset:%d'%(v4(16+4*t),4096*t))
k('s_waitcnt lgkmcnt(1)')
hstore(['buffer_store_dwordx4 %s, v3, %s, %s offen'%(v4(16+4*t),WS,('s70','s72')[t]) for t in range(2)])
k('s_cmp_ge_u32 s3, 2'); k('s_cbranch_scc1 L_x3d')
k('s_waitcnt lgkmcnt(0)')
hstore(['buffer_store_dwordx4 %s, v3, %s, s73 offen'%(v4(24),WS)])
k('L_x3d:')
stamp('epi1')
if OPT['stop']<=3: k('s_branch L_fin')
k('s_mov_b32 s13, 1'); k('s_mov_b32 s14, 0x%x'%X3); k('s_cmp_eq_u32 s12, 1'); k('s_cselect_b32 s15, s15, 0x%x'%H2); k('s_mov_b32 s42, 0x%x'%ST2)
k('s_branch L_pre')
k('L_out:')
k.reset_counts()
for nb in range(5):
    for h2 in range(2): k('v_cvt_pk_bf16_f32 v%d, v%d, v%d'%(16+2*nb+h2,V+4*nb+2*h2,V+4*nb+2*h2+1))
for nb in range(5): k('ds_write_b64 v254, %s offset:%d'%(v2(16+2*nb),512*nb))
for t in range(3):
    for hh in range(2): tr=k('ds_read_b64_tr_b16 %s, v255 offset:%d'%(v2(32+4*t+2*hh),1024*t+128*hh))
k.srd(44,36,TB)
k('v_mul_u32_u24 v10, 208, v8'); k('v_lshl_add_u32 v10, v9, 4, v10'); k('v_add_u32 v10, s67, v10')
k('s_lshl_b32 s70, s64, 6'); k('s_lshl_b32 s72, s3, 4'); k('s_add_u32 s70, s70, s72'); k('s_mul_i32 s70, s70, 1280'); k('s_mul_i32 s72, s69, 160'); k('s_add_u32 s70, s70, s72')
for t in range(3):
    k('v_mul_u32_u24 v14, 208, v%d'%(136+t)); k('v_add3_u32 v%d, v14, v%d, s67'%(16+t,140+t))
    k('v_mul_u32_u24 v14, 1280, v%d'%(136+t)); k('v_add3_u32 v%d, v14, v%d, s70'%(20+t,140+t))
k.need(tr)
for t in range(3): k('ds_write_b128 v10, %s offset:%d'%(v4(32+4*t),64*t))
rr=[k('ds_read_b128 %s, v%d'%(v4(44+4*t),16+t)) for t in range(3)]
for t in range(3):
    k.need(rr[t])
    if t==2: k('s_mov_b32 exec_hi, 0')
    k('buffer_store_dwordx4 %s, v%d, s[44:47], 0 offen'%(v4(44+4*t),20+t))
k('s_mov_b64 exec, -1')
k('L_fin:')
if OPT['stamps']:
    k('s_waitcnt vmcnt(0)')
    stamp('end')
    k('s_memrealtime s[98:99]'); k('s_waitcnt lgkmcnt(0)'); k('v_writelane_b32 v0, s98, 63')
    k('s_lshl_b32 s70, s2, 2'); k('s_add_u32 s70, s70, s3'); k('s_lshl_b32 s70, s70, 8'); k('s_add_u32 s70, s70, 0x%x'%STAMP)
    k('v_lshlrev_b32 v2, 2, v1'); k('buffer_store_dword v0, v2, %s, s70 offen'%WS)
    json.dump(SN,open('stamps.json','w'))
k('L_end:')
k.end(NAME+'_kernel',512,100,256)
n=k.fix(verbose=bool(OPT.get('verbose')))
hdr=''.join(l for l in open('cdna_kernels/%s.s.ref'%NAME).readlines() if l.startswith(';') and '@launch' not in l and 'Override' not in l and 'grid=ceil' not in l)
open(sys.argv[1],'w').write(k.text(hdr))
print('instructions',sum(1 for i in k.ins if i.mn and not i.label),'nop states added',n)
```
